```python
import torch

def _softmax(x, axis=-1):
    return torch.softmax(x, dim=axis)
def _gelu(x):
    return torch.nn.functional.gelu(x, approximate="tanh")
def _silu(x):
    return torch.nn.functional.silu(x)
def _sigmoid(x):
    return torch.sigmoid(x)
def _layernorm(x, axis=-1, eps=1e-5):
    m = x.mean(dim=axis, keepdim=True)
    v = x.var(dim=axis, keepdim=True, unbiased=False)
    return (x - m) / torch.sqrt(v + eps)
def _scatter_add(tgt, idx, src, axis=0):
    return tgt.clone().index_add_(axis, idx, src)
def _segment_sum(src, seg, n):
    out = torch.zeros((n,) + src.shape[1:], dtype=src.dtype)
    return out.index_add_(0, seg, src)
def _pad(x, pw):
    flat = tuple(v for pair in reversed(pw) for v in pair)
    return torch.nn.functional.pad(x, flat)

kernel_name = 'standalone__normalfloat_lut_codebook_lookup__prompt'

def setup_inputs():

    _w = (lambda a: (lambda t: t.to(torch.bfloat16) if t.is_floating_point() else t)(torch.as_tensor(a)))
    B, S, D, F = 1, 2048, 1024, 3584
    G = -1 if -1 > 0 else D
    D = (D // G) * G
    ng = D // G
    nf4 = torch.tensor([
        -1.0, -0.6961928009986877, -0.5250730514526367, -0.39491748809814453,
        -0.28444138169288635, -0.18477343022823334, -0.09105003625154495, 0.0,
        0.07958029955625534, 0.16093020141124725, 0.24611230194568634, 0.33791524171829224,
        0.44070982933044434, 0.5626170039176941, 0.7229568362236023, 1.0
    ], dtype=float)
    qw = torch.randint(0, 16, (D, F)).to(torch.int64)
    absmax = (torch.abs((lambda *s: torch.randn(*s, dtype=torch.bfloat16) * 0.05)(ng, F)) + 0.01).to(float)
    return {
        "x": _w((lambda *s: torch.randn(*s, dtype=torch.bfloat16) * 0.05)(B, S, D)),
        "qw": _w(qw),
        "codebook": _w(nf4),
        "absmax": _w(absmax),
    }

def reference(x, qw, codebook, absmax):
    B, S, D = x.shape
    ng, F = absmax.shape
    G = D // ng
    w_nf = codebook[qw]
    s = (lambda x, n, axis: torch.repeat_interleave(x, n, dim=axis))(absmax, G, axis=0)
    w = (lambda x, dt: x.to(dt))(w_nf * s, x.dtype)
    return torch.einsum("bsd,df->bsf", x, w)
```

```python
import sys

NAME = "standalone__normalfloat_lut_codebook_lookup__prompt"
HEADER = """; Kernarg layout for this problem (56 bytes, ptrs only, base s[0:1]):
"""

A_SLOT = 32768
B_BASE = 3 * A_SLOT
B_SLOT = 14336
LUT_BASE = B_BASE + 2 * B_SLOT
LDS_TOTAL = LUT_BASE + 32768
STG_STRIDE = 240

class Gen:
    def __init__(self):
        self.lines = []
    def e(self, s):
        self.lines.append("    " + s)
    def label(self, s):
        self.lines.append(s + ":")
    def c(self, s):
        self.lines.append("    ; " + s)

def vr(b, n=1):
    return f"v{b}" if n == 1 else f"v[{b}:{b+n-1}]"

def build(opts):
    g = Gen()
    e = g.e
    SX, SQ, SO, SC, SS = 16, 20, 24, 28, 32
    sM0, sN0, sW = 36, 37, 38
    sT0, sT1, sT2, sT3 = 40, 41, 42, 43
    sI = 44
    sAslot = 45
    sAk = 46
    sBk = 47
    sAm0 = 48
    sBd = 49
    sMaskB = 50
    sHi = 52
    sMaskS = 54

    e("s_cmp_ge_u32 s2, 256")
    e("s_cbranch_scc1 L_end")
    e("s_load_dwordx8 s[4:11], s[0:1], 0")
    e("s_load_dwordx2 s[12:13], s[0:1], 32")
    e("v_lshrrev_b32 v1, 6, v0")
    e("v_and_b32 v0, 63, v0")
    e("v_readfirstlane_b32 s%d, v1" % sW)
    e(f"s_and_b32 s{sT0}, s2, 7")
    e(f"s_lshr_b32 s{sT1}, s2, 3")
    e(f"s_and_b32 s{sM0}, s{sT1}, 7")
    e(f"s_lshl_b32 s{sM0}, s{sM0}, 8")
    e(f"s_lshr_b32 s{sT1}, s{sT1}, 3")
    e(f"s_lshl_b32 s{sT0}, s{sT0}, 2")
    e(f"s_add_u32 s{sT0}, s{sT0}, s{sT1}")
    e(f"s_mul_i32 s{sN0}, s{sT0}, 112")
    e(f"s_mov_b32 s{sHi}, 0xffff0000")
    e("s_waitcnt lgkmcnt(0)")
    def srd(b, lo, nbytes):
        e(f"s_mov_b32 s{b}, s{lo}")
        e(f"s_and_b32 s{b+1}, s{lo+1}, 0xffff")
        e(f"s_mov_b32 s{b+2}, {nbytes}")
        e(f"s_mov_b32 s{b+3}, 0x20000")
    srd(SX, 4, 2048 * 1024 * 2)
    srd(SQ, 6, 1024 * 3584 * 4)
    srd(SO, 12, 2048 * 3584 * 2)
    srd(SC, 8, 32)
    srd(SS, 10, 3584 * 2)
    e(f"s_cmp_ge_u32 s{sW}, 4")
    e("s_cbranch_scc1 L_prod")

    ACC = 0 + 16
    F0 = 128
    F1 = 172
    SCL = 216
    vA0b, vA1b = 230, 231
    vA0, vA1, vB0, vB1 = 232, 233, 234, 235
    vStg = 236
    def acc(mi, t): return ACC + (mi * 7 + t) * 4
    def fx(F, mi): return F + mi * 4
    def fw(F, t): return F + 16 + t * 4

    g.c("consumer prologue: codebook / absmax loads, LUT build")
    e("v_lshrrev_b32 v1, 3, v0")
    e("v_lshlrev_b32 v1, 1, v1")
    e(f"s_lshl_b32 s{sT0}, s{sW}, 3")
    e(f"v_mov_b32 v2, s{sT0}")
    e(f"buffer_load_ushort v4, v1, s[{SC}:{SC+3}], 0 offen")
    e(f"buffer_load_ushort v5, v1, s[{SC}:{SC+3}], 0 offen offset:16")
    e(f"buffer_load_dwordx2 v[6:7], v2, s[{SC}:{SC+3}], 0 offen")
    e("v_lshrrev_b32 v3, 4, v0")
    e(f"s_lshl_b32 s{sT1}, s{sN0}, 1")
    e(f"v_lshl_add_u32 v8, v3, 4, s{sT1}")
    e(f"v_lshl_add_u32 v9, v3, 3, s{sT1}")
    for tp in range(3):
        e(f"buffer_load_dwordx4 {vr(SCL+4*tp,4)}, v8, s[{SS}:{SS+3}], 0 offen offset:{64*tp}")
    e(f"buffer_load_dwordx2 {vr(SCL+12,2)}, v9, s[{SS}:{SS+3}], 0 offen offset:192")
    e("v_and_b32 v10, 15, v0")
    e("v_lshrrev_b32 v11, 1, v10")
    e("v_xor_b32 v11, v11, v3")
    e("v_lshlrev_b32 v11, 4, v11")
    e("v_lshl_add_u32 v11, v10, 7, v11")
    e("v_xor_b32 v12, 64, v11")
    e(f"s_lshl_b32 s{sT2}, s{sW}, 13")
    e(f"v_add_u32 v{vA0b}, s{sT2}, v11")
    e(f"v_add_u32 v{vA1b}, s{sT2}, v12")
    e(f"v_mov_b32 v{vA0}, v{vA0b}")
    e(f"v_mov_b32 v{vA1}, v{vA1b}")
    e(f"v_add_u32 v{vB0}, {B_BASE}, v11")
    e(f"v_add_u32 v{vB1}, {B_BASE}, v12")
    e(f"s_mul_i32 s{sT3}, s{sW}, {64*STG_STRIDE}")
    e(f"v_mul_u32_u24 v13, {STG_STRIDE}, v10")
    e(f"v_lshl_add_u32 v13, v3, 4, v13")
    e(f"v_add_u32 v{vStg}, s{sT3}, v13")
    e(f"v_lshlrev_b32 v14, 3, v3")
    e(f"v_sub_u32 v{vStg+1}, v{vStg}, v14")
    e(f"s_add_u32 s{sT2}, s{sT2}, {LUT_BASE}")
    e(f"v_lshl_add_u32 v15, v0, 4, s{sT2}")
    for r in range(112):
        e(f"v_mov_b32 v{ACC+r}, 0")
    e("s_waitcnt vmcnt(4)")
    for z in range(8):
        lo = 4 + (z & 1)
        hsrc = 6 + (z >> 2)
        d = F0 + 4 * z
        for cpy in range(4):
            if (z >> 1) & 1:
                e(f"v_and_or_b32 v{d+cpy}, v{hsrc}, s{sHi}, v{lo}")
            else:
                e(f"v_lshl_or_b32 v{d+cpy}, v{hsrc}, 16, v{lo}")
        e(f"ds_write_b128 v15, {vr(d,4)} offset:{1024*z}")
    e("s_waitcnt lgkmcnt(0)")
    e("s_barrier")
    e(f"s_mov_b32 s{sI}, 0")
    e(f"s_mov_b32 s{sAslot}, 0")
    e(f"s_mov_b32 s{sBd}, {B_SLOT}")
    if opts.get("prio", 1):
        e("s_setprio 3")
    e("s_barrier")
    def reads(F, va, vb):
        r = []
        order = []
        for k in range(7):
            order.append(("w", k))
            if k < 4:
                order.append(("x", k))
        for kind, k in order:
            if kind == "x":
                r.append(f"ds_read_b128 {vr(fx(F,k),4)}, v{va} offset:{2048*k}")
            else:
                r.append(f"ds_read_b128 {vr(fw(F,k),4)}, v{vb} offset:{2048*k}")
        return r
    def mfmas(F):
        r = []
        for mi in range(4):
            for t in range(7):
                a = acc(mi, t)
                r.append(f"v_mfma_f32_16x16x32_bf16 {vr(a,4)}, {vr(fw(F,t),4)}, {vr(fx(F,mi),4)}, {vr(a,4)}")
        return r
    for s in reads(F0, vA0, vB0):
        e(s)
    e("s_waitcnt lgkmcnt(0)")
    g.label("L_cons_loop")
    def block(Fm, rd, extra):
        m = mfmas(Fm)
        rd = list(rd)
        extra = list(extra)
        for idx, ins in enumerate(m):
            e(ins)
            if rd and idx % 2 == 0:
                e(rd.pop(0))
            elif not rd and extra:
                e(extra.pop(0))
        assert not rd and not extra
    extra0 = [
        f"s_add_u32 s{sAslot}, s{sAslot}, {A_SLOT}",
        f"s_cmp_eq_u32 s{sAslot}, {3*A_SLOT}",
        f"s_cselect_b32 s{sAslot}, 0, s{sAslot}",
        f"v_add_u32 v{vA0}, s{sAslot}, v{vA0b}",
        f"v_add_u32 v{vB0}, s{sBd}, v{vB0}",
    ]
    block(F0, reads(F1, vA1, vB1), extra0)
    e("s_waitcnt lgkmcnt(0)")
    e("s_barrier                               ; B_s")
    extra1 = [
        f"v_add_u32 v{vA1}, s{sAslot}, v{vA1b}",
        f"v_add_u32 v{vB1}, s{sBd}, v{vB1}",
        f"s_sub_u32 s{sBd}, 0, s{sBd}",
        f"s_add_u32 s{sI}, s{sI}, 1",
        f"s_cmp_lt_u32 s{sI}, 16",
    ]
    block(F1, reads(F0, vA0, vB0), extra1)
    e("s_waitcnt lgkmcnt(0)")
    e("s_cbranch_scc1 L_cons_loop")
    e("s_setprio 0")
    e("s_waitcnt vmcnt(0)")
    SU = F0
    for d in range(14):
        e(f"v_lshlrev_b32 v{SU+2*d}, 16, v{SCL+d}")
        e(f"v_and_b32 v{SU+2*d+1}, s{sHi}, v{SCL+d}")
    OUTR = F1
    k = 0
    for mi in range(4):
        for tp in range(3):
            t0, t1 = 2 * tp, 2 * tp + 1
            a0, a1 = acc(mi, t0), acc(mi, t1)
            o = OUTR + 4 * (k % 8); k += 1
            srcs = [a0, a1, a0 + 2, a1 + 2]
            for d in range(4):
                e(f"v_pk_mul_f32 {vr(srcs[d],2)}, {vr(srcs[d],2)}, {vr(SU+2*(4*tp+d),2)}")
            for d in range(4):
                e(f"v_cvt_pk_bf16_f32 v{o+d}, v{srcs[d]}, v{srcs[d]+1}")
            e(f"ds_write_b128 v{vStg}, {vr(o,4)} offset:{mi*16*STG_STRIDE + 64*tp}")
        a6 = acc(mi, 6)
        o = OUTR + 4 * (k % 8); k += 1
        for d in range(2):
            e(f"v_pk_mul_f32 {vr(a6+2*d,2)}, {vr(a6+2*d,2)}, {vr(SU+2*(12+d),2)}")
        for d in range(2):
            e(f"v_cvt_pk_bf16_f32 v{o+d}, v{a6+2*d}, v{a6+2*d+1}")
        e(f"ds_write_b64 v{vStg+1}, {vr(o,2)} offset:{mi*16*STG_STRIDE + 192}")
    e("s_waitcnt lgkmcnt(0)")
    e("s_branch L_store")

    g.label("L_prod")
    R0, R1 = 16, 48
    T = 80
    vBo = 96
    vAo = 104
    vLut, vW0, vW1 = 112, 113, 114
    e(f"s_sub_u32 s{sW}, s{sW}, 4")
    e("v_and_b32 v1, 31, v0")
    e("v_lshrrev_b32 v2, 5, v0")
    e(f"s_mul_i32 s{sT0}, s{sW}, {16*14336}")
    e(f"s_lshl_b32 s{sT1}, s{sN0}, 2")
    e(f"s_add_u32 s{sT0}, s{sT0}, s{sT1}")
    e(f"v_mul_u32_u24 v3, {8*14336}, v2")
    e(f"v_lshl_add_u32 v3, v1, 4, v3")
    e(f"v_add_u32 v{vBo}, s{sT0}, v3")
    for r in range(1, 8):
        e(f"v_add_u32 v{vBo+r}, {14336*r}, v{vBo}")
    e(f"s_mov_b32 s{sMaskB}, 0x0fffffff")
    e(f"s_mov_b32 s{sMaskB+1}, 0x0fffffff")
    e("v_lshrrev_b32 v4, 3, v0")
    e("v_lshrrev_b32 v5, 4, v0")
    e("v_and_b32 v6, 7, v0")
    e("v_xor_b32 v6, v6, v5")
    e("v_xor_b32 v7, 4, v6")
    e(f"s_lshl_b32 s{sT0}, s{sW}, 6")
    e(f"s_add_u32 s{sT0}, s{sT0}, s{sM0}")
    e(f"s_lshl_b32 s{sT0}, s{sT0}, 11")
    e(f"v_lshl_add_u32 v4, v4, 11, s{sT0}")
    e("v_lshl_add_u32 v6, v6, 4, v4")
    e("v_lshl_add_u32 v7, v7, 4, v4")
    for u in range(8):
        e(f"v_add_u32 v{vAo+u}, {16384*u - 1024*(u&3)}, v{6 + (u&1)}")
    e(f"s_lshl_b32 s{sAm0}, s{sW}, 13")
    def a_dma():
        for hh in range(2):
            if hh == 0:
                e(f"s_add_u32 m0, s{sAslot}, s{sAm0}")
            else:
                e(f"s_add_u32 m0, m0, 4096")
            e("s_nop 0")
            for u in range(4 * hh, 4 * hh + 4):
                off = f" offset:{1024*(u&3)}" if (u & 3) else ""
                e(f"buffer_load_dwordx4 v{vAo+u}, s[{SX}:{SX+3}], s{sAk} offen{off} lds")
        e(f"s_add_u32 s{sAk}, s{sAk}, 128")
        e(f"s_add_u32 s{sAslot}, s{sAslot}, {A_SLOT}")
        e(f"s_cmp_eq_u32 s{sAslot}, {3*A_SLOT}")
        e(f"s_cselect_b32 s{sAslot}, 0, s{sAslot}")
    def b_load(R):
        for r in range(8):
            e(f"buffer_load_dwordx4 {vr(R+4*r,4)}, v{vBo+r}, s[{SQ}:{SQ+3}], s{sBk} offen")
        e(f"s_add_u32 s{sBk}, s{sBk}, {64*14336}")
    e(f"s_mov_b32 s{sAslot}, 0")
    e(f"s_mov_b32 s{sAk}, 0")
    e(f"s_mov_b32 s{sBk}, 0")
    e(f"s_mov_b64 exec, s[{sMaskB}:{sMaskB+1}]")
    b_load(R0)
    e("s_mov_b64 exec, -1")
    a_dma()
    e(f"s_mov_b64 exec, s[{sMaskB}:{sMaskB+1}]")
    b_load(R1)
    e("s_mov_b64 exec, -1")
    a_dma()
    e(f"v_lshlrev_b32 v3, 2, v1")
    e(f"v_add_u32 v{vLut}, {LUT_BASE}, v3")
    e("v_lshrrev_b32 v4, 3, v1")
    e("v_lshlrev_b32 v4, 5, v4")
    e("v_and_b32 v5, 7, v1")
    e("v_lshl_add_u32 v4, v5, 1, v4")
    e("v_cmp_gt_u32 vcc, 24, v1")
    e("v_add_u32 v5, 16, v4")
    e("v_add_u32 v6, 2, v3")
    e("v_cndmask_b32 v4, v3, v4, vcc")
    e("v_cndmask_b32 v5, v6, v5, vcc")
    e(f"s_lshl_b32 s{sT0}, s{sW}, 1")
    e(f"v_add_u32 v2, s{sT0}, v2")
    for (src, dst) in ((4, vW0), (5, vW1)):
        e(f"v_bfe_u32 v6, v{src}, 1, 3")
        e(f"v_xor_b32 v6, v6, v2")
        e(f"v_lshlrev_b32 v6, 4, v6")
        e(f"v_lshl_add_u32 v6, v{src}, 7, v6")
        e(f"v_add_u32 v{dst}, {B_BASE}, v6")
    e(f"s_mov_b32 s{sI}, -1")
    e("s_barrier")
    e("s_branch L_prod_odd_b")
    def dequant(R, slot):
        e("s_waitcnt vmcnt(24)")
        e(f"s_mov_b64 exec, s[{sMaskB}:{sMaskB+1}]")
        for j in range(4):
            for pp in range(4):
                t = T + 4 * j + pp
                e(f"v_lshl_add_u32 v{t}, v{R+4*(2*pp)+j}, 7, v{vLut}")
                e(f"v_lshl_add_u32 v{t}, v{R+4*(2*pp+1)+j}, 11, v{t}")
                e(f"ds_read_b32 v{t}, v{t}")
        b_load(R)
        for j in range(4):
            e(f"s_waitcnt lgkmcnt({3*4 - 4*j + j})")
            w = vW0 if j < 2 else vW1
            e(f"ds_write_b128 v{w}, {vr(T+4*j,4)} offset:{slot*B_SLOT + 128*(j&1)}")
        e("s_mov_b64 exec, -1")
        e("s_waitcnt vmcnt(24) lgkmcnt(0)")
        e("s_barrier                               ; B_i")
        e(f"s_add_u32 s{sI}, s{sI}, 1")
    g.label("L_prod_odd")
    a_dma()
    g.label("L_prod_odd_b")
    dequant(R0, 0)
    e(f"s_cmp_eq_u32 s{sI}, 14")
    e(f"s_cselect_b32 s{SX+2}, 0, s{SX+2}")
    a_dma()
    dequant(R1, 1)
    e(f"s_cmp_lt_u32 s{sI}, 15")
    e("s_cbranch_scc1 L_prod_odd")
    e("s_waitcnt vmcnt(0)")
    e("s_barrier                               ; B_15")
    e(f"s_add_u32 s{sW}, s{sW}, 4")

    g.label("L_store")
    e("v_lshrrev_b32 v1, 4, v0")
    e("v_and_b32 v2, 15, v0")
    e(f"s_lshl_b32 s{sT0}, s{sW}, 5")
    e(f"v_add_u32 v3, s{sT0}, v1")
    e(f"v_mul_u32_u24 v4, {STG_STRIDE}, v3")
    e("v_lshl_add_u32 v4, v2, 4, v4")
    e(f"v_add_u32 v3, s{sM0}, v3")
    e(f"v_mul_u32_u24 v5, 7168, v3")
    e(f"s_lshl_b32 s{sT1}, s{sN0}, 1")
    e(f"v_lshl_add_u32 v6, v2, 4, s{sT1}")
    e("v_add_u32 v5, v5, v6")
    e(f"s_mov_b32 s{sMaskS}, 0x3fff3fff")
    e(f"s_mov_b32 s{sMaskS+1}, 0x3fff3fff")
    e("s_barrier")
    e(f"s_mov_b64 exec, s[{sMaskS}:{sMaskS+1}]")
    for z in range(8):
        e(f"ds_read_b128 {vr(16+4*z,4)}, v4 offset:{4*STG_STRIDE*z}")
    for z in range(8):
        e(f"s_mov_b32 s{sT0}, {4*7168*z}")
        e(f"s_waitcnt lgkmcnt({7-z})")
        e(f"buffer_store_dwordx4 {vr(16+4*z,4)}, v5, s[{SO}:{SO+3}], s{sT0} offen")
    g.label("L_end")
    e("s_endpgm")

    out = HEADER
    out += f"; @launch grid=(256,1,1) block=(512,1,1) lds={LDS_TOTAL}\n"
    out += '.amdgcn_target "amdgcn-amd-amdhsa--gfx950"\n.text\n'
    out += f".globl {NAME}_kernel\n.p2align 8\n.type {NAME}_kernel,@function\n{NAME}_kernel:\n"
    out += "\n".join(g.lines) + "\n"
    out += f""".section .rodata,"a"
.p2align 6
.amdhsa_kernel {NAME}_kernel
  .amdhsa_next_free_vgpr 256
  .amdhsa_next_free_sgpr 102
  .amdhsa_accum_offset 256
  .amdhsa_group_segment_fixed_size 0
  .amdhsa_kernarg_size 56
  .amdhsa_user_sgpr_count 2
  .amdhsa_user_sgpr_kernarg_segment_ptr 1
  .amdhsa_system_sgpr_workgroup_id_x 1
.end_amdhsa_kernel
"""
    return out

if __name__ == "__main__":
    path = sys.argv[1] if len(sys.argv) > 1 else f"cdna_kernels/{NAME}.s"
    opts = {}
    for a in sys.argv[2:]:
        k, v = a.split("=")
        opts[k] = int(v)
    open(path, "w").write(build(opts))
    print("wrote", path)
```

```python
import sys

NAME = "standalone__normalfloat_lut_codebook_lookup__prompt"
HEADER = """; Kernarg layout for this problem (56 bytes, ptrs only, base s[0:1]):
"""
A_SLOT = 32768
B_SLOT = 14336
SLOT = A_SLOT + B_SLOT
STG_STRIDE = 240
W_OFF = 1 << 24
W_BYTES = 32 * 16 * B_SLOT

class Gen:
    def __init__(self):
        self.lines = []
    def e(self, s):
        self.lines.append("    " + s)
    def label(self, s):
        self.lines.append(s + ":")

def vr(b, n=1):
    return f"v{b}" if n == 1 else f"v[{b}:{b+n-1}]"

def aux(opts, k, default=""):
    v = opts.get(k, default)
    return (" " + v.replace("_", " ")) if v and v != "none" else ""

def mk_stamp(g, ST, vSt, sW, area):
    e = g.e
    def stamp(idx, real=False, lvl=1):
        if not ST or (lvl == 2 and ST != 1): return
        e(("s_memrealtime" if real else "s_memtime") + " s[60:61]")
        e("s_waitcnt lgkmcnt(0)")
        if isinstance(idx, int):
            e(f"v_writelane_b32 v{vSt}, s60, {idx}")
        else:
            e(f"s_add_u32 m0, {idx[0]}, {idx[1]}")
            e("s_nop 0")
            e(f"v_writelane_b32 v{vSt}, s60, m0")
    def stamp_out():
        if not ST: return
        stamp(9)
        e("s_waitcnt vmcnt(0)")
        stamp(10)
        stamp(1, True)
        e("s_mov_b64 exec, -1")
        e("s_mov_b32 s68, s14")
        e("s_and_b32 s69, s15, 0xffff")
        e("s_mov_b32 s70, 0x100000")
        e("s_mov_b32 s71, 0x20000")
        e("s_lshl_b32 s62, s2, 3")
        e(f"s_add_u32 s62, s62, s{sW}")
        e("s_lshl_b32 s62, s62, 8")
        e(f"s_add_u32 s62, s62, {area}")
        e("v_lshlrev_b32 v1, 2, v0")
        e(f"buffer_store_dword v{vSt}, v1, s[68:71], s62 offen")
    return stamp, stamp_out

def srd(e, b, lo, nbytes, add=0):
    if add:
        e(f"s_add_u32 s{b}, s{lo}, {add}")
        e(f"s_addc_u32 s{b+1}, s{lo+1}, 0")
        e(f"s_and_b32 s{b+1}, s{b+1}, 0xffff")
    else:
        e(f"s_mov_b32 s{b}, s{lo}")
        e(f"s_and_b32 s{b+1}, s{lo+1}, 0xffff")
    e(f"s_mov_b32 s{b+2}, {nbytes}")
    e(f"s_mov_b32 s{b+3}, 0x20000")

def build_k1(opts):
    g = Gen(); e = g.e
    ST = opts.get("stamps", 0)
    sW = 38
    stamp, stamp_out = mk_stamp(g, ST, 79, sW, 0x80000)
    SQ, SC, SS, SWs, SX = 16, 20, 24, 28, 32
    e("s_cmp_ge_u32 s2, 256")
    e("s_cbranch_scc1 L1_end")
    e("s_load_dwordx8 s[4:11], s[0:1], 0")
    e("s_load_dwordx2 s[14:15], s[0:1], 48")
    if ST: e("v_mov_b32 v79, 0")
    stamp(0, True); stamp(2)
    e("v_lshrrev_b32 v1, 6, v0")
    e("v_and_b32 v0, 63, v0")
    e(f"v_readfirstlane_b32 s{sW}, v1")
    e("s_and_b32 s40, s2, 7")
    e("s_lshr_b32 s41, s2, 3")
    e("s_and_b32 s42, s41, 15")
    e("s_lshr_b32 s41, s41, 4")
    e("s_lshl_b32 s40, s40, 1")
    e("s_add_u32 s40, s40, s41")
    e("s_lshl_b32 s43, s42, 3")
    e(f"s_add_u32 s43, s43, s{sW}")
    e(f"s_mul_i32 s43, s43, {8*14336}")
    e("s_mul_i32 s44, s40, 896")
    e("s_add_u32 s43, s43, s44")
    e("v_lshlrev_b32 v2, 4, v0")
    e("v_lshlrev_b32 v3, 3, v0")
    e("v_lshlrev_b32 v4, 1, v0")
    e("s_mul_i32 s45, s40, 448")
    e("s_mov_b32 s50, -1")
    e("s_mov_b32 s51, 0x00ffffff")
    e("s_mov_b64 exec, s[50:51]")
    e("s_waitcnt lgkmcnt(0)")
    srd(e, SQ, 6, 1024 * 3584 * 4)
    srd(e, SC, 8, 32)
    srd(e, SS, 10, 3584 * 2)
    e(f"buffer_load_ushort v5, v4, s[{SC}:{SC+3}], 0 offen")
    e(f"buffer_load_dwordx2 v[6:7], v3, s[{SS}:{SS+3}], s45 offen")
    R = 16
    for r in range(8):
        e(f"buffer_load_dwordx4 {vr(R+4*r,4)}, v2, s[{SQ}:{SQ+3}], s43 offen{aux(opts,'k1ld','nt')}")
        if r < 7: e("s_add_u32 s43, s43, 14336")
    if opts.get("xpf", 0):
        srd(e, SX, 4, 2048 * 1024 * 2)
        e("s_lshl_b32 s46, s2, 3")
        e(f"s_add_u32 s46, s46, s{sW}")
        e("s_lshl_b32 s46, s46, 11")
        e("v_lshlrev_b32 v8, 6, v0")
        e("s_mov_b32 exec_hi, 0")
        e(f"buffer_load_dword v78, v8, s[{SX}:{SX+3}], s46 offen")
        e("s_mov_b64 exec, s[50:51]")
    nx = 1 if opts.get("xpf", 0) else 0
    stamp(11)
    srd(e, SWs, 14, W_BYTES, W_OFF)
    e("v_cmp_le_u32 vcc, 28, v0")
    e(f"v_mov_b32 v9, {16*B_SLOT - 448}")
    e("v_mov_b32 v11, 0")
    e("v_cndmask_b32 v9, v11, v9, vcc")
    e("v_add_u32 v9, v9, v2")
    e("s_lshl_b32 s46, s40, 5")
    e("s_add_u32 s46, s46, s42")
    e(f"s_mul_i32 s46, s46, {B_SLOT}")
    e(f"s_and_b32 s47, s{sW}, 1")
    e("s_lshl_b32 s47, s47, 1")
    e(f"s_lshr_b32 s48, s{sW}, 1")
    e("s_lshl_b32 s48, s48, 3")
    e("s_add_u32 s47, s47, s48")
    e("s_mul_i32 s47, s47, 448")
    e("s_add_u32 s46, s46, s47")
    e(f"s_lshl_b32 s49, s{sW}, 6")
    e("v_lshlrev_b32 v10, 2, v0")
    e("v_add_u32 v10, s49, v10")
    e(f"s_waitcnt vmcnt({8+nx})")
    e("v_lshlrev_b32 v5, 16, v5")
    e("s_mov_b64 exec, 0xffff")
    e("ds_write_b32 v10, v5")
    e("s_mov_b64 exec, s[50:51]")
    e("v_lshlrev_b32 v12, 16, v6")
    e("v_and_b32 v13, 0xffff0000, v6")
    e("v_lshlrev_b32 v14, 16, v7")
    e("v_and_b32 v15, 0xffff0000, v7")
    O = 48
    for pi in range(4):
        e(f"s_waitcnt vmcnt({6 - 2*pi + nx + pi})")
        for rr in range(2):
            for j in range(4):
                v = R + 4 * (2 * pi + rr) + j
                e(f"v_lshl_add_u32 v{v}, v{v}, 2, s49")
                e(f"ds_read_b32 v{v}, v{v}")
        for rr in range(2):
            e(f"s_waitcnt lgkmcnt({4 - 4*rr})")
            b = R + 4 * (2 * pi + rr)
            e(f"v_pk_mul_f32 {vr(b,2)}, {vr(b,2)}, v[12:13]")
            e(f"v_pk_mul_f32 {vr(b+2,2)}, {vr(b+2,2)}, v[14:15]")
            e(f"v_cvt_pk_bf16_f32 v{O+4*pi+2*rr}, v{b}, v{b+1}")
            e(f"v_cvt_pk_bf16_f32 v{O+4*pi+2*rr+1}, v{b+2}, v{b+3}")
        pos = (pi & 1) | ((pi >> 1) << 2)
        e(f"buffer_store_dwordx4 {vr(O+4*pi,4)}, v9, s[{SWs}:{SWs+3}], s46 offen offset:{pos*448}{aux(opts,'k1st')}")
        if pi == 0: stamp(3)
    stamp_out()
    g.label("L1_end")
    e("s_endpgm")
    return g.lines, 80, 512

def build_k2(opts):
    g = Gen(); e = g.e
    NS = 3
    LDS_TOTAL = NS * SLOT
    ST = opts.get("stamps", 0)
    NOMFMA = opts.get("nomfma", 0)
    NOREAD = opts.get("noread", 0)
    ROT = opts.get("rot", 1)
    NOA = opts.get("noa", 0); NOB = opts.get("nob", 0)
    SX, SWs, SO = 16, 20, 24
    sM0, sN0, sW, sNT = 36, 37, 38, 39
    sT0, sT1, sT2, sT3 = 40, 41, 42, 43
    sI, sSlot, sAk, sBk, sAm0, sBm0 = 44, 45, 46, 47, 48, 49
    sMaskS = 54
    sC, sRot, sBbase = 56, 58, 59
    vSt = 250
    stamp, stamp_out = mk_stamp(g, ST, vSt, sW, 0)
    e("s_cmp_ge_u32 s2, 256")
    e("s_cbranch_scc1 L2_end")
    e("s_load_dwordx2 s[4:5], s[0:1], 0")
    e("s_load_dwordx2 s[12:13], s[0:1], 32")
    e("s_load_dwordx2 s[14:15], s[0:1], 48")
    if ST: e(f"v_mov_b32 v{vSt}, 0")
    stamp(0, True); stamp(2)
    e("v_lshrrev_b32 v1, 6, v0")
    e("v_and_b32 v0, 63, v0")
    e(f"v_readfirstlane_b32 s{sW}, v1")
    e(f"s_and_b32 s{sT0}, s2, 7")
    if ROT == 1:
        e(f"s_lshl_b32 s{sRot}, s{sT0}, 1")
    else:
        e(f"s_mov_b32 s{sRot}, 0")
    e(f"s_lshr_b32 s{sT1}, s2, 3")
    e(f"s_and_b32 s{sM0}, s{sT1}, 7")
    e(f"s_lshr_b32 s{sT1}, s{sT1}, 3")
    e(f"s_lshl_b32 s{sT0}, s{sT0}, 2")
    e(f"s_add_u32 s{sNT}, s{sT0}, s{sT1}")
    e(f"s_lshl_b32 s{sM0}, s{sM0}, 8")
    e(f"s_cmp_ge_u32 s{sW}, 4")
    e("s_cbranch_scc1 L2_prod")

    ACC = 16
    F0, F1 = 128, 172
    vA0b, vA1b, vB0b, vA0, vA1, vB0, vB1 = 229, 230, 231, 232, 233, 234, 235
    vStgW, vStgR, vOut = 236, 237, 238
    def acc(mi, t): return ACC + (mi * 7 + t) * 4
    def fx(F, mi): return F + mi * 4
    def fw(F, t): return F + 16 + t * 4
    e(f"s_mul_i32 s{sT1}, s{sNT}, 224")
    e("v_lshrrev_b32 v3, 4, v0")
    e("v_and_b32 v10, 15, v0")
    e("v_lshrrev_b32 v11, 1, v10")
    e("v_xor_b32 v11, v11, v3")
    e("v_lshlrev_b32 v11, 4, v11")
    e("v_lshl_add_u32 v11, v10, 7, v11")
    e("v_xor_b32 v12, 64, v11")
    e(f"s_lshl_b32 s{sT2}, s{sW}, 13")
    e(f"v_add_u32 v{vA0b}, s{sT2}, v11")
    e(f"v_add_u32 v{vA1b}, s{sT2}, v12")
    e(f"v_mov_b32 v{vA0}, v{vA0b}")
    e(f"v_mov_b32 v{vA1}, v{vA1b}")
    e("v_bfe_u32 v11, v0, 3, 2")
    e("v_lshrrev_b32 v12, 5, v0")
    e("v_lshl_add_u32 v11, v12, 3, v11")
    e("v_mul_u32_u24 v11, 448, v11")
    e("v_and_b32 v12, 3, v0")
    e("v_lshl_add_u32 v11, v12, 4, v11")
    e("v_bfe_u32 v12, v0, 2, 1")
    e("v_lshl_add_u32 v11, v12, 3, v11")
    e(f"v_add_u32 v{vB0b}, {A_SLOT}, v11")
    e(f"v_mov_b32 v{vB0}, v{vB0b}")
    e(f"v_mov_b32 v{vB1}, v{vB0b}")
    e(f"s_mul_i32 s{sT3}, s{sW}, {64*STG_STRIDE}")
    e(f"v_mul_u32_u24 v13, {STG_STRIDE}, v10")
    e(f"v_lshl_add_u32 v13, v3, 3, v13")
    e(f"v_add_u32 v{vStgW}, s{sT3}, v13")
    e(f"v_mul_u32_u24 v13, {STG_STRIDE}, v3")
    e(f"v_lshl_add_u32 v13, v10, 4, v13")
    e(f"v_add_u32 v{vStgR}, s{sT3}, v13")
    e(f"s_lshl_b32 s{sT3}, s{sW}, 6")
    e(f"s_add_u32 s{sT3}, s{sT3}, s{sM0}")
    e(f"s_mul_i32 s{sT3}, s{sT3}, 7168")
    e(f"s_add_u32 s{sT3}, s{sT3}, s{sT1}")
    e(f"v_mul_u32_u24 v13, 7168, v3")
    e(f"v_lshl_add_u32 v13, v10, 4, v13")
    e(f"v_add_u32 v{vOut}, s{sT3}, v13")
    e(f"s_mov_b32 s{sMaskS}, 0x3fff3fff")
    e(f"s_mov_b32 s{sMaskS+1}, 0x3fff3fff")
    for r in range(112):
        e(f"v_mov_b32 v{ACC+r}, 0")
    e("s_waitcnt lgkmcnt(0)")
    srd(e, SO, 12, 2048 * 3584 * 2)
    e(f"s_mov_b32 s{sI}, 0")
    e(f"s_mov_b32 s{sSlot}, 0")
    if opts.get("prio", 0):
        e("s_setprio 3")
    stamp(4)
    e("s_barrier")
    stamp(5)
    def reads(F, va, vb, h):
        if NOREAD: return []
        r = []
        for k in range(7):
            r.append(f"ds_read_b64_tr_b16 {vr(fw(F,k),2)}, v{vb} offset:{64*k + h*16*448}")
            r.append(f"ds_read_b64_tr_b16 {vr(fw(F,k)+2,2)}, v{vb} offset:{64*k + h*16*448 + 4*448}")
            if k < 4:
                r.append(f"ds_read_b128 {vr(fx(F,k),4)}, v{va} offset:{2048*k}")
        return r
    def mfmas(F):
        r = []
        order = [(mi, t) for mi in range(4) for t in range(7)]
        if opts.get("mord", 0) == 1:
            order = [(mi, t) for t in range(7) for mi in range(4)]
        if opts.get("mord", 0) == 2:
            order = [(mi, (t if mi % 2 == 0 else 6 - t)) for mi in range(4) for t in range(7)]
        if opts.get("mord", 0) == 3:
            order = [((mi if t % 2 == 0 else 3 - mi), t) for t in range(7) for mi in range(4)]
        for mi, t in order:
            if True:
                a = acc(mi, t)
                r.append("s_nop 0" if NOMFMA else f"v_mfma_f32_16x16x32_bf16 {vr(a,4)}, {vr(fw(F,t),4)}, {vr(fx(F,mi),4)}, {vr(a,4)}")
        return r
    for s in reads(F0, vA0, vB0, 0):
        e(s)
    e("s_waitcnt lgkmcnt(0)")
    g.label("L2_cons_loop")
    def block(Fm, rd, extra):
        rd = list(rd); extra = list(extra)
        for idx, ins in enumerate(mfmas(Fm)):
            e(ins)
            if rd: e(rd.pop(0))
            elif extra: e(extra.pop(0))
        assert not rd and not extra
    extra0 = [
        f"s_add_u32 s{sSlot}, s{sSlot}, {SLOT}",
        f"s_cmp_eq_u32 s{sSlot}, {NS*SLOT}",
        f"s_cselect_b32 s{sSlot}, 0, s{sSlot}",
        f"v_add_u32 v{vA0}, s{sSlot}, v{vA0b}",
        f"v_add_u32 v{vB0}, s{sSlot}, v{vB0b}",
    ]
    block(F0, reads(F1, vA1, vB1, 1), extra0)
    e("s_waitcnt lgkmcnt(0)")
    stamp((f"s{sI}", 16), lvl=2)
    e("s_barrier                               ; B_s")
    stamp((f"s{sI}", 32), lvl=2)
    if ST == 3:
        stamp((f"s{sI}", 16), real=True)
        stamp((f"s{sI}", 32))
    extra1 = [
        f"v_add_u32 v{vA1}, s{sSlot}, v{vA1b}",
        f"v_mov_b32 v{vB1}, v{vB0}",
        f"s_add_u32 s{sI}, s{sI}, 1",
        f"s_cmp_lt_u32 s{sI}, 16",
    ]
    block(F1, reads(F0, vA0, vB0, 0), extra1)
    e("s_waitcnt lgkmcnt(0)")
    e("s_cbranch_scc1 L2_cons_loop")
    stamp(6)
    e("s_nop 7")
    OUTR = F1
    for mi in range(4):
        o = OUTR + 14 * (mi & 1)
        for t in range(7):
            a = acc(mi, t)
            for d in range(2):
                e(f"v_cvt_pk_bf16_f32 v{o+2*t+d}, v{a+2*d}, v{a+2*d+1}")
            e(f"ds_write_b64 v{vStgW}, {vr(o+2*t,2)} offset:{mi*16*STG_STRIDE + 32*t}")
        e(f"s_mov_b64 exec, s[{sMaskS}:{sMaskS+1}]")
        rb = acc(mi, 0)
        for z in range(4):
            e(f"ds_read_b128 {vr(rb+4*z,4)}, v{vStgR} offset:{(mi*16+4*z)*STG_STRIDE}")
        for z in range(4):
            e(f"s_mov_b32 s{sT0}, {(mi*16+4*z)*7168}")
            e(f"s_waitcnt lgkmcnt({3-z})")
            e(f"buffer_store_dwordx4 {vr(rb+4*z,4)}, v{vOut}, s[{SO}:{SO+3}], s{sT0} offen{aux(opts,'auxs')}")
        e("s_mov_b64 exec, -1")
        if mi == 0: stamp(7)
    stamp_out()
    e("s_endpgm")

    g.label("L2_prod")
    vAo, vBo = 16, 24
    if opts.get("pprio", 0):
        e("s_setprio 3")
    e(f"s_sub_u32 s{sW}, s{sW}, 4")
    e("v_lshrrev_b32 v4, 3, v0")
    e("v_lshrrev_b32 v5, 4, v0")
    e("v_and_b32 v6, 7, v0")
    e("v_xor_b32 v6, v6, v5")
    e("v_xor_b32 v7, 4, v6")
    e(f"s_lshl_b32 s{sT0}, s{sW}, 6")
    e(f"s_add_u32 s{sT0}, s{sT0}, s{sM0}")
    e(f"s_lshl_b32 s{sT0}, s{sT0}, 11")
    e(f"v_lshl_add_u32 v4, v4, 11, s{sT0}")
    e("v_lshl_add_u32 v6, v6, 4, v4")
    e("v_lshl_add_u32 v7, v7, 4, v4")
    for u in range(8):
        e(f"v_add_u32 v{vAo+u}, {16384*u - 1024*(u&3)}, v{6 + (u&1)}")
    e(f"s_lshl_b32 s{sAm0}, s{sW}, 13")
    e(f"s_mul_i32 s{sBm0}, s{sW}, 3584")
    e(f"v_lshl_add_u32 v{vBo}, v0, 4, s{sBm0}")
    e(f"s_add_u32 s{sBm0}, s{sBm0}, {A_SLOT}")
    e(f"s_mul_i32 s{sBbase}, s{sNT}, {16*B_SLOT}")
    e(f"s_lshl_b32 s{sAk}, s{sRot}, 7")
    e(f"s_mul_i32 s{sBk}, s{sRot}, {B_SLOT}")
    e(f"s_mov_b32 s{sSlot}, 0")
    e(f"s_mov_b32 s{sC}, 0")
    e("s_waitcnt lgkmcnt(0)")
    srd(e, SX, 4, 2048 * 1024 * 2)
    srd(e, SWs, 14, W_BYTES, W_OFF)
    def issue_stage():
        if not NOB:
            e(f"s_add_u32 m0, s{sSlot}, s{sBm0}")
            e(f"s_add_u32 s{sT0}, s{sBk}, s{sBbase}")
            for z in range(4):
                if z == 3: e("s_mov_b32 exec_hi, 0")
                off = f" offset:{1024*z}" if z else ""
                e(f"buffer_load_dwordx4 v{vBo}, s[{SWs}:{SWs+3}], s{sT0} offen{off}{aux(opts,'auxb')} lds")
            e("s_mov_b64 exec, -1")
        for u in range(8):
            if u == 0:
                e(f"s_add_u32 m0, s{sSlot}, s{sAm0}"); e("s_nop 0")
            if u == 4:
                e("s_add_u32 m0, m0, 4096"); e("s_nop 0")
            off = f" offset:{1024*(u&3)}" if (u & 3) else ""
            if not NOA:
                e(f"buffer_load_dwordx4 v{vAo+u}, s[{SX}:{SX+3}], s{sAk} offen{off}{aux(opts,'auxa')} lds")
        e(f"s_add_u32 s{sAk}, s{sAk}, 128")
        e(f"s_and_b32 s{sAk}, s{sAk}, 2047")
        e(f"s_add_u32 s{sBk}, s{sBk}, {B_SLOT}")
        e(f"s_cmp_eq_u32 s{sBk}, {16*B_SLOT}")
        e(f"s_cselect_b32 s{sBk}, 0, s{sBk}")
        e(f"s_add_u32 s{sSlot}, s{sSlot}, {SLOT}")
        e(f"s_cmp_eq_u32 s{sSlot}, {NS*SLOT}")
        e(f"s_cselect_b32 s{sSlot}, 0, s{sSlot}")
    nper = (0 if NOB else 4) + (0 if NOA else 8)
    stamp(11)
    g.label("L2_prod_loop")
    issue_stage()
    e(f"s_add_u32 s{sC}, s{sC}, 1")
    e(f"s_cmp_lt_u32 s{sC}, 2")
    e("s_cbranch_scc1 L2_prod_loop")
    stamp((f"s{sC}", 46), lvl=2)
    e(f"s_waitcnt vmcnt({nper})")
    stamp((f"s{sC}", 14), lvl=2)
    e("s_barrier                               ; B_(sC-3)")
    stamp((f"s{sC}", 30), lvl=2)
    e(f"s_cmp_lt_u32 s{sC}, 16")
    e("s_cbranch_scc1 L2_prod_loop")
    e("s_waitcnt vmcnt(0)")
    e("s_barrier                               ; B_14")
    stamp(47, lvl=2)
    e("s_barrier                               ; B_15")
    if ST:
        e(f"s_add_u32 s{sW}, s{sW}, 4")
        stamp_out()
    g.label("L2_end")
    e("s_endpgm")
    return g.lines, 256, LDS_TOTAL

def kd(name, vgpr):
    return f""".p2align 6
.amdhsa_kernel {name}
  .amdhsa_next_free_vgpr {vgpr}
  .amdhsa_next_free_sgpr 80
  .amdhsa_accum_offset {vgpr}
  .amdhsa_group_segment_fixed_size 0
  .amdhsa_kernarg_size 56
  .amdhsa_user_sgpr_count 2
  .amdhsa_user_sgpr_kernarg_segment_ptr 1
  .amdhsa_system_sgpr_workgroup_id_x 1
  .amdhsa_float_denorm_mode_32 3
.end_amdhsa_kernel
"""

def build(opts):
    l1, v1, lds1 = build_k1(opts)
    l2, v2, lds2 = build_k2(opts)
    out = HEADER
    out += f"; @launch kernel=deq_kernel grid=(256,1,1) block=(512,1,1) lds={lds1}\n"
    out += f"; @launch kernel={NAME}_kernel grid=(256,1,1) block=(512,1,1) lds={lds2}\n"
    out += '.amdgcn_target "amdgcn-amd-amdhsa--gfx950"\n.text\n'
    out += ".globl deq_kernel\n.p2align 8\n.type deq_kernel,@function\ndeq_kernel:\n" + "\n".join(l1) + "\n"
    out += f".globl {NAME}_kernel\n.p2align 8\n.type {NAME}_kernel,@function\n{NAME}_kernel:\n" + "\n".join(l2) + "\n"
    out += '.section .rodata,"a"\n' + kd("deq_kernel", v1) + kd(f"{NAME}_kernel", v2)
    return out

if __name__ == "__main__":
    path = sys.argv[1] if len(sys.argv) > 1 else f"cdna_kernels/{NAME}.s"
    opts = {}
    for a in sys.argv[2:]:
        k, v = a.split("=")
        opts[k] = int(v) if v.lstrip("-").isdigit() else v
    open(path, "w").write(build(opts))
    print("wrote", path)
```

```python
import sys

NAME = "standalone__normalfloat_lut_codebook_lookup__prompt"
HEADER = """; Kernarg layout for this problem (56 bytes, ptrs only, base s[0:1]):
"""
A_SLOT = 32768
B_SLOT = 14336
SLOT = A_SLOT + B_SLOT
STG_STRIDE = 240
W_OFF = 1 << 24
W_BYTES = 32 * 16 * B_SLOT

class Gen:
    def __init__(self):
        self.lines = []
    def e(self, s):
        self.lines.append("    " + s)
    def label(self, s):
        self.lines.append(s + ":")

def vr(b, n=1):
    return f"v{b}" if n == 1 else f"v[{b}:{b+n-1}]"

def aux(opts, k, default=""):
    v = opts.get(k, default)
    return (" " + v.replace("_", " ")) if v and v != "none" else ""

def mk_stamp(g, ST, vSt, sW, area):
    e = g.e
    def stamp(idx, real=False, lvl=1):
        if not ST or (lvl == 2 and ST != 1): return
        e(("s_memrealtime" if real else "s_memtime") + " s[60:61]")
        e("s_waitcnt lgkmcnt(0)")
        if isinstance(idx, int):
            e(f"v_writelane_b32 v{vSt}, s60, {idx}")
        else:
            e(f"s_add_u32 m0, {idx[0]}, {idx[1]}")
            e("s_nop 0")
            e(f"v_writelane_b32 v{vSt}, s60, m0")
    def stamp_out():
        if not ST: return
        stamp(9)
        e("s_waitcnt vmcnt(0)")
        stamp(10)
        stamp(1, True)
        e("s_mov_b64 exec, -1")
        e("s_mov_b32 s68, s14")
        e("s_and_b32 s69, s15, 0xffff")
        e("s_mov_b32 s70, 0x100000")
        e("s_mov_b32 s71, 0x20000")
        e("s_lshl_b32 s62, s2, 3")
        e(f"s_add_u32 s62, s62, s{sW}")
        e("s_lshl_b32 s62, s62, 8")
        e(f"s_add_u32 s62, s62, {area}")
        e("v_lshlrev_b32 v1, 2, v0")
        e(f"buffer_store_dword v{vSt}, v1, s[68:71], s62 offen")
    return stamp, stamp_out

def pad_start(e):
    e("s_memrealtime s[72:73]")
def pad_end(g, ticks, lbl):
    e = g.e
    e("s_waitcnt vmcnt(0) lgkmcnt(0)")
    g.label(lbl)
    e("s_memrealtime s[74:75]")
    e("s_waitcnt lgkmcnt(0)")
    e("s_sub_u32 s74, s74, s72")
    e(f"s_cmp_lt_u32 s74, {ticks}")
    e(f"s_cbranch_scc1 {lbl}")

def srd(e, b, lo, nbytes, add=0):
    if add:
        e(f"s_add_u32 s{b}, s{lo}, {add}")
        e(f"s_addc_u32 s{b+1}, s{lo+1}, 0")
        e(f"s_and_b32 s{b+1}, s{b+1}, 0xffff")
    else:
        e(f"s_mov_b32 s{b}, s{lo}")
        e(f"s_and_b32 s{b+1}, s{lo+1}, 0xffff")
    e(f"s_mov_b32 s{b+2}, {nbytes}")
    e(f"s_mov_b32 s{b+3}, 0x20000")

def build_k1(opts):
    g = Gen(); e = g.e
    ST = opts.get("stamps", 0)
    sW = 38
    stamp, stamp_out = mk_stamp(g, ST, 79, sW, 0x80000)
    SQ, SC, SS, SWs, SX = 16, 20, 24, 28, 32
    e("s_cmp_ge_u32 s2, 256")
    e("s_cbranch_scc1 L1_end")
    if opts.get("pad1", 0): pad_start(e)
    e("s_load_dwordx8 s[4:11], s[0:1], 0")
    e("s_load_dwordx2 s[14:15], s[0:1], 48")
    if ST: e("v_mov_b32 v79, 0")
    stamp(0, True); stamp(2)
    e("v_lshrrev_b32 v1, 6, v0")
    e("v_and_b32 v0, 63, v0")
    e(f"v_readfirstlane_b32 s{sW}, v1")
    e("s_and_b32 s40, s2, 7")
    e("s_lshr_b32 s41, s2, 3")
    e("s_and_b32 s42, s41, 15")
    e("s_lshr_b32 s41, s41, 4")
    e("s_lshl_b32 s40, s40, 1")
    e("s_add_u32 s40, s40, s41")
    e("s_lshl_b32 s43, s42, 3")
    e(f"s_add_u32 s43, s43, s{sW}")
    e(f"s_mul_i32 s43, s43, {8*14336}")
    e("s_mul_i32 s44, s40, 896")
    e("s_add_u32 s43, s43, s44")
    e("v_lshlrev_b32 v2, 4, v0")
    e("v_lshlrev_b32 v3, 3, v0")
    e("v_lshlrev_b32 v4, 1, v0")
    e("s_mul_i32 s45, s40, 448")
    e("s_mov_b32 s50, -1")
    e("s_mov_b32 s51, 0x00ffffff")
    e("s_mov_b64 exec, s[50:51]")
    e("s_waitcnt lgkmcnt(0)")
    srd(e, SQ, 6, 1024 * 3584 * 4)
    srd(e, SC, 8, 32)
    srd(e, SS, 10, 3584 * 2)
    e(f"buffer_load_ushort v5, v4, s[{SC}:{SC+3}], 0 offen")
    e(f"buffer_load_dwordx2 v[6:7], v3, s[{SS}:{SS+3}], s45 offen")
    R = 16
    for r in range(8):
        e(f"buffer_load_dwordx4 {vr(R+4*r,4)}, v2, s[{SQ}:{SQ+3}], s43 offen{aux(opts,'k1ld','nt')}")
        if r < 7: e("s_add_u32 s43, s43, 14336")
    if opts.get("xpf", 0):
        srd(e, SX, 4, 2048 * 1024 * 2)
        e("s_lshl_b32 s46, s2, 3")
        e(f"s_add_u32 s46, s46, s{sW}")
        e("s_lshl_b32 s46, s46, 11")
        e("v_lshlrev_b32 v8, 6, v0")
        e("s_mov_b32 exec_hi, 0")
        e(f"buffer_load_dword v78, v8, s[{SX}:{SX+3}], s46 offen")
        e("s_mov_b64 exec, s[50:51]")
    nx = 1 if opts.get("xpf", 0) else 0
    stamp(11)
    srd(e, SWs, 14, W_BYTES, W_OFF)
    e("v_cmp_le_u32 vcc, 28, v0")
    e(f"v_mov_b32 v9, {16*B_SLOT - 448}")
    e("v_mov_b32 v11, 0")
    e("v_cndmask_b32 v9, v11, v9, vcc")
    e("v_add_u32 v9, v9, v2")
    e("s_lshl_b32 s46, s40, 5")
    e("s_add_u32 s46, s46, s42")
    e(f"s_mul_i32 s46, s46, {B_SLOT}")
    e(f"s_and_b32 s47, s{sW}, 1")
    e("s_lshl_b32 s47, s47, 1")
    e(f"s_lshr_b32 s48, s{sW}, 1")
    e("s_lshl_b32 s48, s48, 3")
    e("s_add_u32 s47, s47, s48")
    e("s_mul_i32 s47, s47, 448")
    e("s_add_u32 s46, s46, s47")
    e(f"s_lshl_b32 s49, s{sW}, 6")
    e("v_lshlrev_b32 v10, 2, v0")
    e("v_add_u32 v10, s49, v10")
    e(f"s_waitcnt vmcnt({8+nx})")
    e("v_lshlrev_b32 v5, 16, v5")
    e("s_mov_b64 exec, 0xffff")
    e("ds_write_b32 v10, v5")
    e("s_mov_b64 exec, s[50:51]")
    e("v_lshlrev_b32 v12, 16, v6")
    e("v_and_b32 v13, 0xffff0000, v6")
    e("v_lshlrev_b32 v14, 16, v7")
    e("v_and_b32 v15, 0xffff0000, v7")
    O = 48
    for pi in range(4):
        e(f"s_waitcnt vmcnt({6 - 2*pi + nx + pi})")
        for rr in range(2):
            for j in range(4):
                v = R + 4 * (2 * pi + rr) + j
                e(f"v_lshl_add_u32 v{v}, v{v}, 2, s49")
                e(f"ds_read_b32 v{v}, v{v}")
        for rr in range(2):
            e(f"s_waitcnt lgkmcnt({4 - 4*rr})")
            b = R + 4 * (2 * pi + rr)
            e(f"v_pk_mul_f32 {vr(b,2)}, {vr(b,2)}, v[12:13]")
            e(f"v_pk_mul_f32 {vr(b+2,2)}, {vr(b+2,2)}, v[14:15]")
            e(f"v_cvt_pk_bf16_f32 v{O+4*pi+2*rr}, v{b}, v{b+1}")
            e(f"v_cvt_pk_bf16_f32 v{O+4*pi+2*rr+1}, v{b+2}, v{b+3}")
        pos = (pi & 1) | ((pi >> 1) << 2)
        e(f"buffer_store_dwordx4 {vr(O+4*pi,4)}, v9, s[{SWs}:{SWs+3}], s46 offen offset:{pos*448}{aux(opts,'k1st')}")
        if pi == 0: stamp(3)
    stamp_out()
    if opts.get("pad1", 0): pad_end(g, opts["pad1"], "L1_pad")
    g.label("L1_end")
    e("s_endpgm")
    return g.lines, 80, 512

def build_k2(opts):
    g = Gen(); e = g.e
    NS = 3
    LDS_TOTAL = NS * SLOT
    ST = opts.get("stamps", 0)
    NOMFMA = opts.get("nomfma", 0)
    NOREAD = opts.get("noread", 0)
    ROT = opts.get("rot", 1)
    NOA = opts.get("noa", 0); NOB = opts.get("nob", 0)
    SX, SWs, SO = 16, 20, 24
    sM0, sN0, sW, sNT = 36, 37, 38, 39
    sT0, sT1, sT2, sT3 = 40, 41, 42, 43
    sI, sSlot, sAk, sBk, sAm0, sBm0 = 44, 45, 46, 47, 48, 49
    sMaskS = 54
    sC, sRot, sBbase = 56, 58, 59
    vSt = 250
    stamp, stamp_out = mk_stamp(g, ST, vSt, sW, 0)
    e("s_cmp_ge_u32 s2, 256")
    e("s_cbranch_scc1 L2_end")
    if opts.get("pad2", 0): pad_start(e)
    e("s_load_dwordx2 s[4:5], s[0:1], 0")
    e("s_load_dwordx2 s[12:13], s[0:1], 32")
    e("s_load_dwordx2 s[14:15], s[0:1], 48")
    if ST: e(f"v_mov_b32 v{vSt}, 0")
    stamp(0, True); stamp(2)
    e("v_lshrrev_b32 v1, 6, v0")
    e("v_and_b32 v0, 63, v0")
    e(f"v_readfirstlane_b32 s{sW}, v1")
    e(f"s_and_b32 s{sT0}, s2, 7")
    if ROT == 1:
        e(f"s_lshl_b32 s{sRot}, s{sT0}, 1")
    else:
        e(f"s_mov_b32 s{sRot}, 0")
    e(f"s_lshr_b32 s{sT1}, s2, 3")
    e(f"s_and_b32 s{sM0}, s{sT1}, 7")
    e(f"s_lshr_b32 s{sT1}, s{sT1}, 3")
    e(f"s_lshl_b32 s{sT0}, s{sT0}, 2")
    e(f"s_add_u32 s{sNT}, s{sT0}, s{sT1}")
    e(f"s_lshl_b32 s{sM0}, s{sM0}, 8")
    e(f"s_cmp_ge_u32 s{sW}, 4")
    e("s_cbranch_scc1 L2_prod")

    ACC = 16
    F0, F1 = 128, 172
    vA0b, vA1b, vB0b, vA0, vA1, vB0, vB1 = 229, 230, 231, 232, 233, 234, 235
    vStgW, vStgR, vOut = 236, 237, 238
    def acc(mi, t): return ACC + (mi * 7 + t) * 4
    def fx(F, mi): return F + mi * 4
    def fw(F, t): return F + 16 + t * 4
    e(f"s_mul_i32 s{sT1}, s{sNT}, 224")
    e("v_lshrrev_b32 v3, 4, v0")
    e("v_and_b32 v10, 15, v0")
    e("v_lshrrev_b32 v11, 1, v10")
    e("v_xor_b32 v11, v11, v3")
    e("v_lshlrev_b32 v11, 4, v11")
    e("v_lshl_add_u32 v11, v10, 7, v11")
    e("v_xor_b32 v12, 64, v11")
    e(f"s_lshl_b32 s{sT2}, s{sW}, 13")
    e(f"v_add_u32 v{vA0b}, s{sT2}, v11")
    e(f"v_add_u32 v{vA1b}, s{sT2}, v12")
    e(f"v_mov_b32 v{vA0}, v{vA0b}")
    e(f"v_mov_b32 v{vA1}, v{vA1b}")
    e("v_bfe_u32 v11, v0, 3, 2")
    e("v_lshrrev_b32 v12, 5, v0")
    e("v_lshl_add_u32 v11, v12, 3, v11")
    e("v_mul_u32_u24 v11, 448, v11")
    e("v_and_b32 v12, 3, v0")
    e("v_lshl_add_u32 v11, v12, 4, v11")
    e("v_bfe_u32 v12, v0, 2, 1")
    e("v_lshl_add_u32 v11, v12, 3, v11")
    e(f"v_add_u32 v{vB0b}, {A_SLOT}, v11")
    e(f"v_mov_b32 v{vB0}, v{vB0b}")
    e(f"v_mov_b32 v{vB1}, v{vB0b}")
    e(f"s_mul_i32 s{sT3}, s{sW}, {64*STG_STRIDE}")
    e(f"v_mul_u32_u24 v13, {STG_STRIDE}, v10")
    e(f"v_lshl_add_u32 v13, v3, 3, v13")
    e(f"v_add_u32 v{vStgW}, s{sT3}, v13")
    e(f"v_mul_u32_u24 v13, {STG_STRIDE}, v3")
    e(f"v_lshl_add_u32 v13, v10, 4, v13")
    e(f"v_add_u32 v{vStgR}, s{sT3}, v13")
    e(f"s_lshl_b32 s{sT3}, s{sW}, 6")
    e(f"s_add_u32 s{sT3}, s{sT3}, s{sM0}")
    e(f"s_mul_i32 s{sT3}, s{sT3}, 7168")
    e(f"s_add_u32 s{sT3}, s{sT3}, s{sT1}")
    e(f"v_mul_u32_u24 v13, 7168, v3")
    e(f"v_lshl_add_u32 v13, v10, 4, v13")
    e(f"v_add_u32 v{vOut}, s{sT3}, v13")
    e(f"s_mov_b32 s{sMaskS}, 0x3fff3fff")
    e(f"s_mov_b32 s{sMaskS+1}, 0x3fff3fff")
    for r in range(112):
        e(f"v_mov_b32 v{ACC+r}, 0")
    e("s_waitcnt lgkmcnt(0)")
    srd(e, SO, 12, 2048 * 3584 * 2)
    e(f"s_mov_b32 s{sI}, 0")
    e(f"s_mov_b32 s{sSlot}, 0")
    if opts.get("prio", 0):
        e("s_setprio 3")
    stamp(4)
    e("s_barrier")
    stamp(5)
    def reads(F, va, vb, h):
        if NOREAD: return []
        r = []
        for k in range(7):
            r.append(f"ds_read_b64_tr_b16 {vr(fw(F,k),2)}, v{vb} offset:{64*k + h*16*448}")
            r.append(f"ds_read_b64_tr_b16 {vr(fw(F,k)+2,2)}, v{vb} offset:{64*k + h*16*448 + 4*448}")
            if k < 4:
                r.append(f"ds_read_b128 {vr(fx(F,k),4)}, v{va} offset:{2048*k}")
        return r
    def mfmas(F):
        r = []
        order = [(mi, t) for mi in range(4) for t in range(7)]
        if opts.get("mord", 0) == 1:
            order = [(mi, t) for t in range(7) for mi in range(4)]
        if opts.get("mord", 0) == 2:
            order = [(mi, (t if mi % 2 == 0 else 6 - t)) for mi in range(4) for t in range(7)]
        if opts.get("mord", 0) == 3:
            order = [((mi if t % 2 == 0 else 3 - mi), t) for t in range(7) for mi in range(4)]
        for mi, t in order:
            if True:
                a = acc(mi, t)
                r.append("s_nop 0" if NOMFMA else f"v_mfma_f32_16x16x32_bf16 {vr(a,4)}, {vr(fw(F,t),4)}, {vr(fx(F,mi),4)}, {vr(a,4)}")
        return r
    for s in reads(F0, vA0, vB0, 0):
        e(s)
    e("s_waitcnt lgkmcnt(0)")
    g.label("L2_cons_loop")
    def block(Fm, rd, extra):
        rd = list(rd); extra = list(extra)
        for idx, ins in enumerate(mfmas(Fm)):
            e(ins)
            if rd: e(rd.pop(0))
            elif extra: e(extra.pop(0))
        assert not rd and not extra
    extra0 = [
        f"s_add_u32 s{sSlot}, s{sSlot}, {SLOT}",
        f"s_cmp_eq_u32 s{sSlot}, {NS*SLOT}",
        f"s_cselect_b32 s{sSlot}, 0, s{sSlot}",
        f"v_add_u32 v{vA0}, s{sSlot}, v{vA0b}",
        f"v_add_u32 v{vB0}, s{sSlot}, v{vB0b}",
    ]
    block(F0, reads(F1, vA1, vB1, 1), extra0)
    e("s_waitcnt lgkmcnt(0)")
    stamp((f"s{sI}", 16), lvl=2)
    e("s_barrier                               ; B_s")
    stamp((f"s{sI}", 32), lvl=2)
    if ST == 3:
        stamp((f"s{sI}", 16), real=True)
        stamp((f"s{sI}", 32))
    extra1 = [
        f"v_add_u32 v{vA1}, s{sSlot}, v{vA1b}",
        f"v_mov_b32 v{vB1}, v{vB0}",
        f"s_add_u32 s{sI}, s{sI}, 1",
        f"s_cmp_lt_u32 s{sI}, 16",
    ]
    block(F1, reads(F0, vA0, vB0, 0), extra1)
    e("s_waitcnt lgkmcnt(0)")
    e("s_cbranch_scc1 L2_cons_loop")
    stamp(6)
    e("s_nop 7")
    OUTR = F1
    for mi in range(4):
        o = OUTR + 14 * (mi & 1)
        for t in range(7):
            a = acc(mi, t)
            for d in range(2):
                e(f"v_cvt_pk_bf16_f32 v{o+2*t+d}, v{a+2*d}, v{a+2*d+1}")
            e(f"ds_write_b64 v{vStgW}, {vr(o+2*t,2)} offset:{mi*16*STG_STRIDE + 32*t}")
        e(f"s_mov_b64 exec, s[{sMaskS}:{sMaskS+1}]")
        rb = acc(mi, 0)
        for z in range(4):
            e(f"ds_read_b128 {vr(rb+4*z,4)}, v{vStgR} offset:{(mi*16+4*z)*STG_STRIDE}")
        for z in range(4):
            e(f"s_mov_b32 s{sT0}, {(mi*16+4*z)*7168}")
            e(f"s_waitcnt lgkmcnt({3-z})")
            e(f"buffer_store_dwordx4 {vr(rb+4*z,4)}, v{vOut}, s[{SO}:{SO+3}], s{sT0} offen{aux(opts,'auxs')}")
        e("s_mov_b64 exec, -1")
        if mi == 0: stamp(7)
    stamp_out()
    if opts.get("pad2", 0): pad_end(g, opts["pad2"], "L2_pad")
    e("s_endpgm")

    g.label("L2_prod")
    vAo, vBo = 16, 24
    if opts.get("pprio", 0):
        e("s_setprio 3")
    e(f"s_sub_u32 s{sW}, s{sW}, 4")
    e("v_lshrrev_b32 v4, 3, v0")
    e("v_lshrrev_b32 v5, 4, v0")
    e("v_and_b32 v6, 7, v0")
    e("v_xor_b32 v6, v6, v5")
    e("v_xor_b32 v7, 4, v6")
    e(f"s_lshl_b32 s{sT0}, s{sW}, 6")
    e(f"s_add_u32 s{sT0}, s{sT0}, s{sM0}")
    e(f"s_lshl_b32 s{sT0}, s{sT0}, 11")
    e(f"v_lshl_add_u32 v4, v4, 11, s{sT0}")
    e("v_lshl_add_u32 v6, v6, 4, v4")
    e("v_lshl_add_u32 v7, v7, 4, v4")
    for u in range(8):
        e(f"v_add_u32 v{vAo+u}, {16384*u - 1024*(u&3)}, v{6 + (u&1)}")
    e(f"s_lshl_b32 s{sAm0}, s{sW}, 13")
    e(f"s_mul_i32 s{sBm0}, s{sW}, 3584")
    e(f"v_lshl_add_u32 v{vBo}, v0, 4, s{sBm0}")
    e(f"s_add_u32 s{sBm0}, s{sBm0}, {A_SLOT}")
    e(f"s_mul_i32 s{sBbase}, s{sNT}, {16*B_SLOT}")
    e(f"s_lshl_b32 s{sAk}, s{sRot}, 7")
    e(f"s_mul_i32 s{sBk}, s{sRot}, {B_SLOT}")
    e(f"s_mov_b32 s{sSlot}, 0")
    e(f"s_mov_b32 s{sC}, 0")
    e("s_waitcnt lgkmcnt(0)")
    srd(e, SX, 4, 2048 * 1024 * 2)
    srd(e, SWs, 14, W_BYTES, W_OFF)
    def issue_stage():
        if not NOB:
            e(f"s_add_u32 m0, s{sSlot}, s{sBm0}")
            e(f"s_add_u32 s{sT0}, s{sBk}, s{sBbase}")
            for z in range(4):
                if z == 3: e("s_mov_b32 exec_hi, 0")
                off = f" offset:{1024*z}" if z else ""
                e(f"buffer_load_dwordx4 v{vBo}, s[{SWs}:{SWs+3}], s{sT0} offen{off}{aux(opts,'auxb')} lds")
            e("s_mov_b64 exec, -1")
        for u in range(8):
            if u == 0:
                e(f"s_add_u32 m0, s{sSlot}, s{sAm0}"); e("s_nop 0")
            if u == 4:
                e("s_add_u32 m0, m0, 4096"); e("s_nop 0")
            off = f" offset:{1024*(u&3)}" if (u & 3) else ""
            if not NOA:
                e(f"buffer_load_dwordx4 v{vAo+u}, s[{SX}:{SX+3}], s{sAk} offen{off}{aux(opts,'auxa')} lds")
        e(f"s_add_u32 s{sAk}, s{sAk}, 128")
        e(f"s_and_b32 s{sAk}, s{sAk}, 2047")
        e(f"s_add_u32 s{sBk}, s{sBk}, {B_SLOT}")
        e(f"s_cmp_eq_u32 s{sBk}, {16*B_SLOT}")
        e(f"s_cselect_b32 s{sBk}, 0, s{sBk}")
        e(f"s_add_u32 s{sSlot}, s{sSlot}, {SLOT}")
        e(f"s_cmp_eq_u32 s{sSlot}, {NS*SLOT}")
        e(f"s_cselect_b32 s{sSlot}, 0, s{sSlot}")
    nper = (0 if NOB else 4) + (0 if NOA else 8)
    stamp(11)
    g.label("L2_prod_loop")
    issue_stage()
    e(f"s_add_u32 s{sC}, s{sC}, 1")
    e(f"s_cmp_lt_u32 s{sC}, 2")
    e("s_cbranch_scc1 L2_prod_loop")
    stamp((f"s{sC}", 46), lvl=2)
    e(f"s_waitcnt vmcnt({nper})")
    stamp((f"s{sC}", 14), lvl=2)
    e("s_barrier                               ; B_(sC-3)")
    stamp((f"s{sC}", 30), lvl=2)
    e(f"s_cmp_lt_u32 s{sC}, 16")
    e("s_cbranch_scc1 L2_prod_loop")
    e("s_waitcnt vmcnt(0)")
    e("s_barrier                               ; B_14")
    stamp(47, lvl=2)
    e("s_barrier                               ; B_15")
    if ST:
        e(f"s_add_u32 s{sW}, s{sW}, 4")
        stamp_out()
    g.label("L2_end")
    e("s_endpgm")
    return g.lines, 256, LDS_TOTAL

def kd(name, vgpr):
    return f""".p2align 6
.amdhsa_kernel {name}
  .amdhsa_next_free_vgpr {vgpr}
  .amdhsa_next_free_sgpr 80
  .amdhsa_accum_offset {vgpr}
  .amdhsa_group_segment_fixed_size 0
  .amdhsa_kernarg_size 56
  .amdhsa_user_sgpr_count 2
  .amdhsa_user_sgpr_kernarg_segment_ptr 1
  .amdhsa_system_sgpr_workgroup_id_x 1
  .amdhsa_float_denorm_mode_32 3
.end_amdhsa_kernel
"""

def build(opts):
    l1, v1, lds1 = build_k1(opts)
    l2, v2, lds2 = build_k2(opts)
    out = HEADER
    out += f"; @launch kernel=deq_kernel grid=(256,1,1) block=(512,1,1) lds={lds1}\n"
    out += f"; @launch kernel={NAME}_kernel grid=(256,1,1) block=(512,1,1) lds={lds2}\n"
    out += '.amdgcn_target "amdgcn-amd-amdhsa--gfx950"\n.text\n'
    out += ".globl deq_kernel\n.p2align 8\n.type deq_kernel,@function\ndeq_kernel:\n" + "\n".join(l1) + "\n"
    out += f".globl {NAME}_kernel\n.p2align 8\n.type {NAME}_kernel,@function\n{NAME}_kernel:\n" + "\n".join(l2) + "\n"
    out += '.section .rodata,"a"\n' + kd("deq_kernel", v1) + kd(f"{NAME}_kernel", v2)
    return out

if __name__ == "__main__":
    path = sys.argv[1] if len(sys.argv) > 1 else f"cdna_kernels/{NAME}.s"
    opts = {}
    for a in sys.argv[2:]:
        k, v = a.split("=")
        opts[k] = int(v) if v.lstrip("-").isdigit() else v
    open(path, "w").write(build(opts))
    print("wrote", path)
```

```python
import sys

NAME = "standalone__normalfloat_lut_codebook_lookup__prompt"
HEADER = """; Kernarg layout for this problem (56 bytes, ptrs only, base s[0:1]):
"""
A_SLOT = 32768
B_SLOT = 14336
SLOT = A_SLOT + B_SLOT
NS = 3
LUT_OFF = NS * SLOT
LDS_TOTAL = LUT_OFF + 512
STG_STRIDE = 240
W_OFF = 1 << 24
W_BYTES = 32 * 16 * B_SLOT
FL_OFF = W_BYTES
T_OFF = FL_OFF + 32 * 512
WS_BYTES = T_OFF + 128

class Gen:
    def __init__(self): self.lines = []
    def e(self, s): self.lines.append("    " + s)
    def label(self, s): self.lines.append(s + ":")

def vr(b, n=1): return f"v{b}" if n == 1 else f"v[{b}:{b+n-1}]"
def aux(opts, k, default=""):
    v = opts.get(k, default)
    return (" " + v.replace("_", " ")) if v and v != "none" else ""

class VM:
    def __init__(self, e): self.e = e; self.ops = []
    def issue(self, name, text): self.e(text); self.ops.append(name)
    def wait(self, names, extra=""):
        last = max(i for i, n in enumerate(self.ops) if n in names)
        assert all(n in self.ops for n in names), names
        y = len(self.ops) - 1 - last
        assert y <= 63
        self.e(f"s_waitcnt vmcnt({y}){extra}")

def build(opts):
    g = Gen(); e = g.e
    ST = opts.get("stamps", 0)
    NPOLL = opts.get("npoll", 64)
    FB = opts.get("forcefb", 0)
    WST = aux(opts, "wst")
    SX, SWs, SO, SQ, SC, SS, SD = 16, 20, 24, 28, 64, 68, 84
    sM0, sA, sW, sNT = 36, 37, 38, 39
    sT0, sT1, sT2, sT3 = 40, 41, 42, 43
    sI, sSlot, sAk, sWk, sAm0, sBm0 = 44, 45, 46, 47, 48, 49
    sM56, sRdy, sMaskS = 50, 52, 54
    sC, sMode, sJ, sWbase = 56, 57, 58, 59
    sQoff, sLut, sSt, sFl, sCnt, sBit, sNp, sXcc = 72, 73, 74, 75, 76, 77, 78, 79
    sPub, sImg = 88, 89
    vSt = 251
    def stamp(idx, real=False, lvl=1):
        if not ST or (lvl == 2 and ST != 1): return
        e(("s_memrealtime" if real else "s_memtime") + " s[60:61]")
        e("s_waitcnt lgkmcnt(0)")
        if isinstance(idx, int):
            e(f"v_writelane_b32 v{vSt}, s60, {idx}")
        else:
            e(f"s_add_u32 m0, {idx[0]}, {idx[1]}"); e("s_nop 0")
            e(f"v_writelane_b32 v{vSt}, s60, m0")
    def stamp_out():
        if not ST: return
        stamp(9); e("s_waitcnt vmcnt(0)"); stamp(10); stamp(1, True)
        e("s_mov_b64 exec, -1")
        e("s_mov_b32 s80, s34"); e("s_and_b32 s81, s35, 0xffff"); e("s_mov_b32 s82, 0x100000"); e("s_mov_b32 s83, 0x20000")
        e("s_lshl_b32 s62, s2, 3"); e(f"s_add_u32 s62, s62, s{sW}"); e("s_lshl_b32 s62, s62, 8")
        e("v_lshlrev_b32 v1, 2, v0")
        e(f"buffer_store_dword v{vSt}, v1, s[80:83], s62 offen")
    def srd(b, lo, nbytes, add=0):
        if add:
            e(f"s_add_u32 s{b}, s{lo}, {add}"); e(f"s_addc_u32 s{b+1}, s{lo+1}, 0"); e(f"s_and_b32 s{b+1}, s{b+1}, 0xffff")
        else:
            e(f"s_mov_b32 s{b}, s{lo}"); e(f"s_and_b32 s{b+1}, s{lo+1}, 0xffff")
        e(f"s_mov_b32 s{b+2}, {nbytes}"); e(f"s_mov_b32 s{b+3}, 0x20000")

    vQ, vL16, vTag, vScl, vFl, vDst, vJunk = 240, 241, 242, 244, 248, 249, 250
    R, O = 128, 160
    vAo, vPoll = 16, 24
    full = lambda: e("s_mov_b64 exec, -1")
    m56 = lambda: e(f"s_mov_b64 exec, s[{sM56}:{sM56+1}]")

    e("s_cmp_ge_u32 s2, 256")
    e("s_cbranch_scc1 L_end")
    e("s_load_dwordx8 s[4:11], s[0:1], 0")
    e("s_load_dwordx4 s[12:15], s[0:1], 32")
    e("s_load_dwordx2 s[34:35], s[0:1], 48")
    if ST: e(f"v_mov_b32 v{vSt}, 0")
    stamp(0, True); stamp(2)
    e("v_lshrrev_b32 v1, 6, v0")
    e("v_and_b32 v0, 63, v0")
    e(f"v_readfirstlane_b32 s{sW}, v1")
    e(f"s_and_b32 s{sT0}, s2, 7")
    e(f"s_lshr_b32 s{sT1}, s2, 3")
    e(f"s_and_b32 s{sM0}, s{sT1}, 7")
    e(f"s_add_u32 s{sA}, s{sM0}, s{sT0}")
    e(f"s_and_b32 s{sA}, s{sA}, 7")
    e(f"s_lshr_b32 s{sT1}, s{sT1}, 3")
    e(f"s_lshl_b32 s{sT0}, s{sT0}, 2")
    e(f"s_add_u32 s{sNT}, s{sT0}, s{sT1}")
    e(f"s_lshl_b32 s{sM0}, s{sM0}, 8")
    e(f"s_and_b32 s{sJ}, s{sW}, 3")
    e(f"s_lshr_b32 s{sMode}, s{sW}, 2")
    e(f"v_lshlrev_b32 v{vL16}, 4, v0")
    e("v_cmp_le_u32 vcc, 28, v0")
    e(f"v_mov_b32 v2, {2*14336 - 448}")
    e("v_mov_b32 v3, 224")
    e("v_cndmask_b32 v2, 0, v2, vcc")
    e("v_cndmask_b32 v3, 0, v3, vcc")
    e(f"v_add_u32 v{vQ}, v2, v{vL16}")
    e(f"v_lshlrev_b32 v{vFl}, 3, v0")
    e(f"v_sub_u32 v3, v{vFl}, v3")
    e("v_lshlrev_b32 v4, 1, v0")
    e(f"v_mov_b32 v5, {T_OFF}")
    e(f"s_mov_b32 s{sM56}, -1")
    e(f"s_mov_b32 s{sM56+1}, 0x00ffffff")
    e(f"s_lshl_b32 s{sSt}, s{sA}, 1")
    e(f"s_add_u32 s{sSt}, s{sSt}, s{sMode}")
    e(f"s_mul_i32 s{sSlot}, s{sMode}, {SLOT}")
    e(f"s_mul_i32 s{sWbase}, s{sNT}, {16*B_SLOT}")
    e(f"s_mul_i32 s{sBm0}, s{sJ}, 3584")
    e(f"s_mul_i32 s{sT3}, s{sNT}, 224")
    def calc_prod():
        e(f"s_lshl_b32 s{sQoff}, s{sSt}, 2")
        e(f"s_add_u32 s{sQoff}, s{sQoff}, s{sJ}")
        e(f"s_mul_i32 s{sQoff}, s{sQoff}, {16*14336}")
        e(f"s_mul_i32 s{sT0}, s{sNT}, 448")
        e(f"s_add_u32 s{sQoff}, s{sQoff}, s{sT0}")
    calc_prod()
    e("s_waitcnt lgkmcnt(0)")
    srd(SQ, 6, 1024 * 3584 * 4)
    srd(SC, 8, 32)
    srd(SS, 10, 3584 * 2)
    srd(SWs, 34, WS_BYTES, W_OFF)
    srd(SX, 4, 2048 * 1024 * 2)
    def small(vm):
        vm.issue("cb", f"buffer_load_ushort v6, v4, s[{SC}:{SC+3}], 0 offen")
        vm.issue("am", f"buffer_load_dwordx2 v[14:15], v3, s[{SS}:{SS+3}], s{sT3} offen")
        vm.issue("T", f"buffer_load_dwordx2 {vr(vTag,2)}, v5, s[{SWs}:{SWs+3}], 0 offen sc1")
    def qload(vm, n):
        i, rr = n >> 1, n & 1
        row = 8 * (i & 1) + 4 * (i >> 1) + rr
        e(f"s_add_u32 s{sT0}, s{sQoff}, {row*14336}")
        vm.issue(f"q{n}", f"buffer_load_dwordx4 {vr(R+4*n,4)}, v{vQ}, s[{SQ}:{SQ+3}], s{sT0} offen{aux(opts,'qld','nt')}")
    def calc_dst():
        e(f"s_add_u32 s{sT1}, s{sSlot}, s{sBm0}")
        e(f"s_add_u32 s{sT1}, s{sT1}, {A_SLOT}")
        e(f"v_add_u32 v{vDst}, s{sT1}, v{vL16}")
    def consts():
        e(f"s_lshl_b32 s{sLut}, s{sW}, 6")
        e(f"s_add_u32 s{sLut}, s{sLut}, {LUT_OFF}")
        e(f"s_lshl_b32 s{sFl}, s{sNT}, 9")
        e(f"s_add_u32 s{sFl}, s{sFl}, {FL_OFF}")
        e(f"s_mul_i32 s{sImg}, s{sSt}, {B_SLOT}")
        e(f"s_add_u32 s{sImg}, s{sImg}, s{sWbase}")
        e(f"s_add_u32 s{sImg}, s{sImg}, s{sBm0}")
        e(f"s_lshl_b32 s{sPub}, s{sSt}, 2")
        e(f"s_add_u32 s{sPub}, s{sPub}, s{sJ}")
        e(f"s_lshl_b32 s{sPub}, s{sPub}, 3")
        e(f"s_add_u32 s{sPub}, s{sPub}, s{sFl}")
        e(f"s_getreg_b32 s{sXcc}, hwreg(HW_REG_XCC_ID, 0, 4)")
        calc_dst()
    def lut_init(vm):
        vm.wait(["cb", "am", "T"])
        e("v_lshlrev_b32 v6, 16, v6")
        e(f"v_lshl_add_u32 v7, v0, 2, s{sLut}")
        e("s_mov_b64 exec, 0xffff")
        e("ds_write_b32 v7, v6")
        full()
        e(f"v_lshlrev_b32 v{vScl}, 16, v14")
        e(f"v_and_b32 v{vScl+1}, 0xffff0000, v14")
        e(f"v_lshlrev_b32 v{vScl+2}, 16, v15")
        e(f"v_and_b32 v{vScl+3}, 0xffff0000, v15")
        e(f"s_mov_b32 s{sT0}, 1664525")
        e(f"s_mov_b32 s{sT1}, 22695477")
        e(f"v_mul_lo_u32 v{vTag}, v{vTag}, s{sT0}")
        e(f"v_mul_lo_u32 v{vTag+1}, v{vTag+1}, s{sT1}")
        e(f"v_add_u32 v{vTag}, 1013904223, v{vTag}")
        e(f"v_add_u32 v{vTag+1}, 0x3c6ef35f, v{vTag+1}")
        e(f"v_and_b32 v{vTag}, -16, v{vTag}")
        e(f"v_or_b32 v{vTag}, s{sXcc}, v{vTag}")
    def unit(vm, i):
        vm.wait([f"q{2*i}", f"q{2*i+1}"])
        for n in range(8):
            v = R + 8 * i + n
            e(f"v_lshl_add_u32 v{v}, v{v}, 2, s{sLut}")
            e(f"ds_read_b32 v{v}, v{v}")
        for rr in range(2):
            e(f"s_waitcnt lgkmcnt({4 - 4*rr})")
            b = R + 8 * i + 4 * rr
            e(f"v_pk_mul_f32 {vr(b,2)}, {vr(b,2)}, {vr(vScl,2)}")
            e(f"v_pk_mul_f32 {vr(b+2,2)}, {vr(b+2,2)}, {vr(vScl+2,2)}")
            e(f"v_cvt_pk_bf16_f32 v{O+4*i+2*rr}, v{b}, v{b+1}")
            e(f"v_cvt_pk_bf16_f32 v{O+4*i+2*rr+1}, v{b+2}, v{b+3}")
        vm.issue(f"st{i}", f"buffer_store_dwordx4 {vr(O+4*i,4)}, v{vL16}, s[{SWs}:{SWs+3}], s{sImg} offen offset:{896*i}{WST}")
        e(f"ds_write_b128 v{vDst}, {vr(O+4*i,4)} offset:{896*i}")
    def publish(vm=None):
        e("s_mov_b64 exec, 1")
        t = f"buffer_store_dwordx2 {vr(vTag,2)}, v{vFl}, s[{SWs}:{SWs+3}], s{sPub} offen{WST}"
        if vm: vm.issue("flag", t)
        else: e(t)
        full()
    e(f"s_cmp_eq_u32 s{sMode}, 1")
    e("s_cbranch_scc1 L_P")

    vm = VM(e)
    small(vm)
    stamp(11)
    m56()
    for n in range(8): qload(vm, n)
    full()
    TOUCH = opts.get("touch", 1)
    if TOUCH:
        e(f"s_and_b32 s{sT0}, s{sNT}, 3")
        e(f"s_lshl_b32 s{sT0}, s{sT0}, 6")
        e(f"s_add_u32 s{sT0}, s{sT0}, s{sM0}")
        e(f"s_lshl_b32 s{sT0}, s{sT0}, 11")
        e(f"s_add_u32 s{sT1}, s{sA}, s{sJ}")
        e(f"s_add_u32 s{sT1}, s{sT1}, 7")
        e(f"s_and_b32 s{sT1}, s{sT1}, 7")
        e(f"s_lshl_b32 s{sT1}, s{sT1}, 1")
        e(f"s_add_u32 s{sT2}, s{sSt}, s{sJ}")
        e(f"s_cmp_lt_u32 s{sJ}, 2")
        e(f"s_cselect_b32 s{sT1}, s{sT2}, s{sT1}")
        e(f"s_lshl_b32 s{sT1}, s{sT1}, 7")
        e(f"s_add_u32 s{sT0}, s{sT0}, s{sT1}")
        e("v_lshlrev_b32 v8, 11, v0")
        vm.issue("tch", f"buffer_load_dword v{vJunk}, v8, s[{SX}:{SX+3}], s{sT0} offen")
        if TOUCH == 2:
            vm.issue("tch2", f"buffer_load_dword v{vJunk}, v8, s[{SX}:{SX+3}], s{sT0} offen offset:64")
    consts()
    ACC = 16
    F0, F1 = 128, 172
    vA0b, vA1b, vB0b, vA0, vA1, vB0, vB1 = 229, 230, 231, 232, 233, 234, 235
    vStgW, vStgR, vOut = 236, 237, 238
    def acc(mi, t): return ACC + (mi * 7 + t) * 4
    def fx(F, mi): return F + mi * 4
    def fw(F, t): return F + 16 + t * 4
    srd(SO, 12, 2048 * 3584 * 2)
    e("v_lshrrev_b32 v9, 4, v0")
    e("v_and_b32 v10, 15, v0")
    e("v_lshrrev_b32 v11, 1, v10")
    e("v_xor_b32 v11, v11, v9")
    e("v_lshlrev_b32 v11, 4, v11")
    e("v_lshl_add_u32 v11, v10, 7, v11")
    e("v_xor_b32 v12, 64, v11")
    e(f"s_lshl_b32 s{sT2}, s{sW}, 13")
    e(f"v_add_u32 v{vA0b}, s{sT2}, v11")
    e(f"v_add_u32 v{vA1b}, s{sT2}, v12")
    e(f"v_mov_b32 v{vA0}, v{vA0b}")
    e(f"v_mov_b32 v{vA1}, v{vA1b}")
    e("v_bfe_u32 v11, v0, 3, 2")
    e("v_lshrrev_b32 v12, 5, v0")
    e("v_lshl_add_u32 v11, v12, 3, v11")
    e("v_mul_u32_u24 v11, 448, v11")
    e("v_and_b32 v12, 3, v0")
    e("v_lshl_add_u32 v11, v12, 4, v11")
    e("v_bfe_u32 v12, v0, 2, 1")
    e("v_lshl_add_u32 v11, v12, 3, v11")
    e(f"v_add_u32 v{vB0b}, {A_SLOT}, v11")
    e(f"v_mov_b32 v{vB0}, v{vB0b}")
    e(f"v_mov_b32 v{vB1}, v{vB0b}")
    e(f"s_mul_i32 s{sT2}, s{sW}, {64*STG_STRIDE}")
    e(f"v_mul_u32_u24 v13, {STG_STRIDE}, v10")
    e(f"v_lshl_add_u32 v13, v9, 3, v13")
    e(f"v_add_u32 v{vStgW}, s{sT2}, v13")
    e(f"v_mul_u32_u24 v13, {STG_STRIDE}, v9")
    e(f"v_lshl_add_u32 v13, v10, 4, v13")
    e(f"v_add_u32 v{vStgR}, s{sT2}, v13")
    e(f"s_lshl_b32 s{sT2}, s{sW}, 6")
    e(f"s_add_u32 s{sT2}, s{sT2}, s{sM0}")
    e(f"s_mul_i32 s{sT2}, s{sT2}, 7168")
    e(f"s_add_u32 s{sT2}, s{sT2}, s{sT3}")
    e(f"v_mul_u32_u24 v13, 7168, v9")
    e(f"v_lshl_add_u32 v13, v10, 4, v13")
    e(f"v_add_u32 v{vOut}, s{sT2}, v13")
    e(f"s_mov_b32 s{sMaskS}, 0x3fff3fff")
    e(f"s_mov_b32 s{sMaskS+1}, 0x3fff3fff")
    for r in range(112):
        e(f"v_mov_b32 v{ACC+r}, 0")
    lut_init(vm)
    m56()
    for i in range(4):
        unit(vm, i)
        if i == 0: stamp(12)
    full()
    stamp(3)
    PUBI = opts.get("pubi", -1)
    if PUBI < 0:
        e("s_waitcnt vmcnt(0)")
        publish()
        stamp(13)
    e(f"s_mov_b32 s{sI}, 0")
    e("s_waitcnt lgkmcnt(0)")
    stamp(4)
    e("s_barrier                               ; B_-1")
    stamp(5)
    def reads(F, va, vb, h):
        r = []
        for k in range(7):
            r.append(f"ds_read_b64_tr_b16 {vr(fw(F,k),2)}, v{vb} offset:{64*k + h*16*448}")
            r.append(f"ds_read_b64_tr_b16 {vr(fw(F,k)+2,2)}, v{vb} offset:{64*k + h*16*448 + 4*448}")
            if k < 4:
                r.append(f"ds_read_b128 {vr(fx(F,k),4)}, v{va} offset:{2048*k}")
        return r
    def mfmas(F):
        order = [((mi if t % 2 == 0 else 3 - mi), t) for t in range(7) for mi in range(4)]
        return [f"v_mfma_f32_16x16x32_bf16 {vr(acc(mi,t),4)}, {vr(fw(F,t),4)}, {vr(fx(F,mi),4)}, {vr(acc(mi,t),4)}" for mi, t in order]
    for s in reads(F0, vA0, vB0, 0): e(s)
    e("s_waitcnt lgkmcnt(0)")
    WBI = opts.get("wbi", -1)
    if WBI >= 0:
        e(f"s_lshr_b32 s{sT0}, s2, 3")
        e(f"s_or_b32 s{sT0}, s{sT0}, s{sW}")
        e(f"s_cmp_eq_u32 s{sT0}, 0")
        e(f"s_cselect_b32 s{sT3}, {WBI}, 99")
    g.label("L_cons_loop")
    def block(Fm, rd, extra):
        rd = list(rd); extra = list(extra)
        for ins in mfmas(Fm):
            e(ins)
            if rd: e(rd.pop(0))
            elif extra: e(extra.pop(0))
        assert not rd and not extra
    extra0 = [
        f"s_add_u32 s{sSlot}, s{sSlot}, {SLOT}",
        f"s_cmp_eq_u32 s{sSlot}, {NS*SLOT}",
        f"s_cselect_b32 s{sSlot}, 0, s{sSlot}",
        f"v_add_u32 v{vA0}, s{sSlot}, v{vA0b}",
        f"v_add_u32 v{vB0}, s{sSlot}, v{vB0b}",
    ]
    if PUBI >= 0: extra0.append(f"s_cmp_lg_u32 s{sI}, {PUBI}")
    elif WBI >= 0: extra0.append(f"s_cmp_lg_u32 s{sI}, s{sT3}")
    block(F0, reads(F1, vA1, vB1, 1), extra0)
    if PUBI >= 0:
        e("s_cbranch_scc1 L_cons_nopub")
        e("s_waitcnt vmcnt(0)")
        publish()
        g.label("L_cons_nopub")
    elif WBI >= 0:
        e("s_cbranch_scc1 L_cons_nopub")
        e("buffer_wbl2 sc1")
        g.label("L_cons_nopub")
    e("s_waitcnt lgkmcnt(0)")
    stamp((f"s{sI}", 16), lvl=2)
    e("s_barrier                               ; B_s")
    stamp((f"s{sI}", 32), lvl=2)
    extra1 = [
        f"v_add_u32 v{vA1}, s{sSlot}, v{vA1b}",
        f"v_mov_b32 v{vB1}, v{vB0}",
        f"s_add_u32 s{sI}, s{sI}, 1",
        f"s_cmp_lt_u32 s{sI}, 16",
    ]
    block(F1, reads(F0, vA0, vB0, 0), extra1)
    e("s_waitcnt lgkmcnt(0)")
    e("s_cbranch_scc1 L_cons_loop")
    stamp(6)
    e("s_nop 7")
    OUTR = F1
    for mi in range(4):
        o = OUTR + 14 * (mi & 1)
        for t in range(7):
            a = acc(mi, t)
            for d in range(2):
                e(f"v_cvt_pk_bf16_f32 v{o+2*t+d}, v{a+2*d}, v{a+2*d+1}")
            e(f"ds_write_b64 v{vStgW}, {vr(o+2*t,2)} offset:{mi*16*STG_STRIDE + 32*t}")
        e(f"s_mov_b64 exec, s[{sMaskS}:{sMaskS+1}]")
        rb = acc(mi, 0)
        for z in range(4):
            e(f"ds_read_b128 {vr(rb+4*z,4)}, v{vStgR} offset:{(mi*16+4*z)*STG_STRIDE}")
        for z in range(4):
            e(f"s_mov_b32 s{sT0}, {(mi*16+4*z)*7168}")
            e(f"s_waitcnt lgkmcnt({3-z})")
            e(f"buffer_store_dwordx4 {vr(rb+4*z,4)}, v{vOut}, s[{SO}:{SO+3}], s{sT0} offen{aux(opts,'auxs')}")
        full()
        if mi == 0: stamp(7)
    stamp_out()
    e("s_endpgm")

    g.label("L_P")
    vm = VM(e)
    sK0, sK2 = 90, 91
    def p_setup():
        e("v_lshrrev_b32 v8, 3, v0")
        e("v_lshrrev_b32 v9, 4, v0")
        e("v_and_b32 v10, 7, v0")
        e("v_xor_b32 v10, v10, v9")
        e("v_xor_b32 v11, 4, v10")
        e(f"s_lshl_b32 s{sT0}, s{sJ}, 6")
        e(f"s_add_u32 s{sT0}, s{sT0}, s{sM0}")
        e(f"s_lshl_b32 s{sT0}, s{sT0}, 11")
        e(f"v_lshl_add_u32 v8, v8, 11, s{sT0}")
        e("v_lshl_add_u32 v10, v10, 4, v8")
        e("v_lshl_add_u32 v11, v11, 4, v8")
        for u in range(8):
            e(f"v_add_u32 v{vAo+u}, {16384*u - 1024*(u&3)}, v{10 + (u&1)}")
        e(f"s_lshl_b32 s{sAm0}, s{sJ}, 13")
        e(f"s_lshl_b32 s{sK0}, s{sA}, 8")
        e(f"s_add_u32 s{sAk}, s{sK0}, 128")
        e(f"s_add_u32 s{sT0}, s{sA}, 1")
        e(f"s_and_b32 s{sT0}, s{sT0}, 7")
        e(f"s_lshl_b32 s{sK2}, s{sT0}, 8")
        e(f"s_mov_b32 s{sNp}, {NPOLL}")
        consts()
    def xq(pos, quad):
        e(f"s_add_u32 m0, s{sAm0}, {pos*SLOT + 4096*quad}")
        e("s_nop 0")
        sk = (sK0, sAk, sK2)[pos]
        for u in range(4 * quad, 4 * quad + 4):
            off = f" offset:{1024*(u&3)}" if (u & 3) else ""
            vm.issue(f"x{pos}_{u}", f"buffer_load_dwordx4 v{vAo+u}, s[{SX}:{SX+3}], s{sk} offen{off} lds")
    def poll_issue(vm=None):
        t = f"buffer_load_dwordx2 {vr(vPoll,2)}, v{vFl}, s[{SWs}:{SWs+3}], s{sFl} offen sc1"
        if vm: vm.issue("poll", t)
        else: e(t)
    def poll_eval():
        e(f"v_cmp_eq_u64 s[{sRdy}:{sRdy+1}], {vr(vPoll,2)}, {vr(vTag,2)}")
    script = opts.get("ps", "sQSL0a1b2c3dMefpNF")
    cur = "full"
    def want(m):
        nonlocal cur
        if cur != m:
            (full if m == "full" else m56)(); cur = m
    for ch in script:
        if ch == "S": want("full"); p_setup()
        elif ch == "s": want("full"); small(vm); stamp(11)
        elif ch in "Qqr":
            want("m56")
            for n in {"Q": range(8), "q": range(4), "r": range(4, 8)}[ch]: qload(vm, n)
        elif ch == "L": want("full"); lut_init(vm)
        elif ch in "0123":
            want("m56"); unit(vm, int(ch))
            if ch == "0": stamp(12)
            if ch == "3": stamp(3)
        elif ch in "abcdef":
            want("full"); k = "abcdef".index(ch); xq(k >> 1, k & 1)
        elif ch == "M":
            vm.wait([f"x0_{u}" for u in range(8)]); stamp(4)
            e("s_barrier                               ; B_-1"); stamp(32)
        elif ch == "N":
            vm.wait([f"x1_{u}" for u in range(8)], " lgkmcnt(0)")
            e("s_barrier                               ; B_0"); stamp(33)
        elif ch == "p": want("full"); poll_issue(vm)
        elif ch == "F":
            want("full"); vm.wait([f"st{i}" for i in range(4)]); publish(vm); stamp(13)
        elif ch == "D":
            for _ in range(8): e("s_nop 15")
    want("full")
    e(f"s_lshr_b32 s{sSt}, s{sK2}, 7")
    e(f"s_lshl_b32 s{sBit}, s{sSt}, 2")
    e(f"s_add_u32 s{sBit}, s{sBit}, s{sJ}")
    e(f"s_mov_b32 s{sSlot}, {2*SLOT}")
    e(f"s_mov_b32 s{sC}, 2")
    e(f"s_mov_b32 s{sCnt}, 0")
    e(f"s_mov_b64 s[{sRdy}:{sRdy+1}], 0")
    vm.wait(["poll"])
    e("s_branch L_P_eval")
    g.label("L_P_loop")
    e(f"s_add_u32 s{sT0}, s{sA}, s{sC}")
    e(f"s_cmp_lt_u32 s{sC}, 9")
    e(f"s_cselect_b32 s{sT1}, 7, 0")
    e(f"s_cselect_b32 s{sT2}, 0, 1")
    e(f"s_add_u32 s{sT0}, s{sT0}, s{sT1}")
    e(f"s_and_b32 s{sT0}, s{sT0}, 7")
    e(f"s_lshl_b32 s{sT0}, s{sT0}, 1")
    e(f"s_add_u32 s{sSt}, s{sT0}, s{sT2}")
    e(f"s_lshl_b32 s{sAk}, s{sSt}, 7")
    e(f"s_lshl_b32 s{sBit}, s{sSt}, 2")
    e(f"s_add_u32 s{sBit}, s{sBit}, s{sJ}")
    e(f"s_mov_b32 s{sCnt}, 0")
    e(f"s_bitcmp1_b64 s[{sRdy}:{sRdy+1}], s{sBit}")
    e("s_cbranch_scc1 L_P_nopoll")
    poll_issue()
    g.label("L_P_nopoll")
    for u in range(8):
        if u == 0:
            e(f"s_add_u32 m0, s{sSlot}, s{sAm0}"); e("s_nop 0")
        if u == 4:
            e("s_add_u32 m0, m0, 4096"); e("s_nop 0")
        off = f" offset:{1024*(u&3)}" if (u & 3) else ""
        e(f"buffer_load_dwordx4 v{vAo+u}, s[{SX}:{SX+3}], s{sAk} offen{off} lds")
    e(f"s_bitcmp1_b64 s[{sRdy}:{sRdy+1}], s{sBit}")
    e("s_cbranch_scc1 L_P_ready")
    e("s_waitcnt vmcnt(8)")
    if not FB: poll_eval()
    e("s_nop 3")
    e(f"s_bitcmp1_b64 s[{sRdy}:{sRdy+1}], s{sBit}")
    e("s_cbranch_scc1 L_P_ready")
    e("s_barrier                               ; B_(c-2) early")
    g.label("L_P_poll")
    poll_issue()
    e("s_waitcnt vmcnt(0)")
    g.label("L_P_eval")
    if not FB: poll_eval()
    e(f"s_add_u32 s{sCnt}, s{sCnt}, 1")
    e("s_nop 3")
    e(f"s_bitcmp1_b64 s[{sRdy}:{sRdy+1}], s{sBit}")
    e("s_cbranch_scc1 L_P_ready")
    e(f"s_cmp_lt_u32 s{sCnt}, s{sNp}")
    e("s_cbranch_scc1 L_P_poll")
    e(f"s_mov_b32 s{sNp}, 0")
    e(f"s_mov_b32 s{sImg}, 0x7ff00000")
    calc_prod()
    calc_dst()
    vmf = VM(e)
    m56()
    for n in range(8): qload(vmf, n)
    for i in range(4): unit(vmf, i)
    full()
    e("s_waitcnt vmcnt(0) lgkmcnt(0)")
    e("s_branch L_P_next")
    g.label("L_P_ready")
    e(f"s_add_u32 s{sT1}, s{sSlot}, s{sBm0}")
    e(f"s_add_u32 m0, s{sT1}, {A_SLOT}")
    e(f"s_mul_i32 s{sWk}, s{sSt}, {B_SLOT}")
    e(f"s_add_u32 s{sWk}, s{sWk}, s{sWbase}")
    e(f"s_add_u32 s{sWk}, s{sWk}, s{sBm0}")
    for z in range(4):
        if z == 3: e("s_mov_b32 exec_hi, 0")
        off = f" offset:{1024*z}" if z else ""
        e(f"buffer_load_dwordx4 v{vL16}, s[{SWs}:{SWs+3}], s{sWk} offen{off} sc1 lds")
    e("s_mov_b32 exec_hi, -1")
    stamp((f"s{sC}", 47), lvl=2)
    e(f"s_cmp_lg_u32 s{sCnt}, 0")
    e("s_cbranch_scc1 L_P_next")
    e("s_waitcnt vmcnt(12)")
    e("s_barrier                               ; B_(c-2)")
    g.label("L_P_next")
    e(f"s_add_u32 s{sSlot}, s{sSlot}, {SLOT}")
    e(f"s_cmp_eq_u32 s{sSlot}, {NS*SLOT}")
    e(f"s_cselect_b32 s{sSlot}, 0, s{sSlot}")
    e(f"s_add_u32 s{sC}, s{sC}, 1")
    e(f"s_cmp_lt_u32 s{sC}, 16")
    e("s_cbranch_scc1 L_P_loop")
    e("s_waitcnt vmcnt(0)")
    e("s_barrier                               ; B_14")
    e(f"s_cmp_lg_u32 s{sJ}, 0")
    e("s_cbranch_scc1 L_P_b15")
    srd(SD, 14, 256)
    e("s_mov_b64 exec, 1")
    e("v_mov_b32 v26, 1")
    e(f"buffer_atomic_add v26, v{vFl}, s[{SD}:{SD+3}], 0 offen sc0")
    e("s_barrier                               ; B_15")
    e("s_waitcnt vmcnt(0)")
    e("v_readfirstlane_b32 s40, v26")
    e("s_cmp_lg_u32 s40, 255")
    e("s_cbranch_scc1 L_P_fin")
    e(f"v_mov_b32 v5, {T_OFF}")
    e(f"buffer_store_dwordx2 {vr(vTag,2)}, v5, s[{SWs}:{SWs+3}], 0 offen sc1")
    e("s_branch L_P_fin")
    g.label("L_P_b15")
    e("s_barrier                               ; B_15")
    g.label("L_P_fin")
    stamp_out()
    g.label("L_end")
    e("s_endpgm")

    out = HEADER
    out += f"; @launch grid=(256,1,1) block=(512,1,1) lds={LDS_TOTAL}\n"
    out += '.amdgcn_target "amdgcn-amd-amdhsa--gfx950"\n.text\n'
    out += f".globl {NAME}_kernel\n.p2align 8\n.type {NAME}_kernel,@function\n{NAME}_kernel:\n" + "\n".join(g.lines) + "\n"
    out += f""".section .rodata,"a"
.p2align 6
.amdhsa_kernel {NAME}_kernel
  .amdhsa_next_free_vgpr 256
  .amdhsa_next_free_sgpr 96
  .amdhsa_accum_offset 256
  .amdhsa_group_segment_fixed_size 0
  .amdhsa_kernarg_size 56
  .amdhsa_user_sgpr_count 2
  .amdhsa_user_sgpr_kernarg_segment_ptr 1
  .amdhsa_system_sgpr_workgroup_id_x 1
  .amdhsa_float_denorm_mode_32 3
.end_amdhsa_kernel
"""
    return out

if __name__ == "__main__":
    path = sys.argv[1] if len(sys.argv) > 1 else f"cdna_kernels/{NAME}.s"
    opts = {}
    for a in sys.argv[2:]:
        k, v = a.split("=")
        opts[k] = int(v) if v.lstrip("-").isdigit() and k != "ps" else v
    open(path, "w").write(build(opts))
    print("wrote", path)
```

```python
import sys

NAME = "standalone__normalfloat_lut_codebook_lookup__prompt"
HEADER = """; Kernarg layout for this problem (56 bytes, ptrs only, base s[0:1]):
"""
A_SLOT = 32768
B_SLOT = 14336
SLOT = A_SLOT + B_SLOT
NS = 3
LUT_OFF = NS * SLOT
LDS_TOTAL = LUT_OFF + 512
STG_STRIDE = 240
W_OFF = 1 << 24
W_BYTES = 32 * 16 * B_SLOT
FL_OFF = W_BYTES
T_OFF = FL_OFF + 32 * 512
WS_BYTES = T_OFF + 128

class Gen:
    def __init__(self): self.lines = []
    def e(self, s): self.lines.append("    " + s)
    def label(self, s): self.lines.append(s + ":")

def vr(b, n=1): return f"v{b}" if n == 1 else f"v[{b}:{b+n-1}]"
def aux(opts, k, default=""):
    v = opts.get(k, default)
    return (" " + v.replace("_", " ")) if v and v != "none" else ""

class VM:
    def __init__(self, e): self.e = e; self.ops = []
    def issue(self, name, text): self.e(text); self.ops.append(name)
    def wait(self, names, extra=""):
        last = max(i for i, n in enumerate(self.ops) if n in names)
        assert all(n in self.ops for n in names), names
        y = len(self.ops) - 1 - last
        assert y <= 63
        self.e(f"s_waitcnt vmcnt({y}){extra}")

def build(opts):
    g = Gen(); e = g.e
    ST = opts.get("stamps", 0)
    NPOLL = opts.get("npoll", 64)
    FB = opts.get("forcefb", 0)
    WST = aux(opts, "wst")
    SX, SWs, SO, SQ, SC, SS, SD = 16, 20, 24, 28, 64, 68, 84
    sM0, sA, sW, sNT = 36, 37, 38, 39
    sT0, sT1, sT2, sT3 = 40, 41, 42, 43
    sI, sSlot, sAk, sWk, sAm0, sBm0 = 44, 45, 46, 47, 48, 49
    sM56, sRdy, sMaskS = 50, 52, 54
    sC, sMode, sJ, sWbase = 56, 57, 58, 59
    sQoff, sLut, sSt, sFl, sCnt, sBit, sNp, sXcc = 72, 73, 74, 75, 76, 77, 78, 79
    sPub, sImg = 88, 89
    vSt = 251
    def stamp(idx, real=False, lvl=1):
        if not ST or (lvl == 2 and ST != 1): return
        e(("s_memrealtime" if real else "s_memtime") + " s[60:61]")
        e("s_waitcnt lgkmcnt(0)")
        if isinstance(idx, int):
            e(f"v_writelane_b32 v{vSt}, s60, {idx}")
        else:
            e(f"s_add_u32 m0, {idx[0]}, {idx[1]}"); e("s_nop 0")
            e(f"v_writelane_b32 v{vSt}, s60, m0")
    def stamp_out():
        if not ST: return
        stamp(9); e("s_waitcnt vmcnt(0)"); stamp(10); stamp(1, True)
        e("s_mov_b64 exec, -1")
        e("s_mov_b32 s80, s34"); e("s_and_b32 s81, s35, 0xffff"); e("s_mov_b32 s82, 0x100000"); e("s_mov_b32 s83, 0x20000")
        e("s_lshl_b32 s62, s2, 3"); e(f"s_add_u32 s62, s62, s{sW}"); e("s_lshl_b32 s62, s62, 8")
        e("v_lshlrev_b32 v1, 2, v0")
        e(f"buffer_store_dword v{vSt}, v1, s[80:83], s62 offen")
    def srd(b, lo, nbytes, add=0):
        if add:
            e(f"s_add_u32 s{b}, s{lo}, {add}"); e(f"s_addc_u32 s{b+1}, s{lo+1}, 0"); e(f"s_and_b32 s{b+1}, s{b+1}, 0xffff")
        else:
            e(f"s_mov_b32 s{b}, s{lo}"); e(f"s_and_b32 s{b+1}, s{lo+1}, 0xffff")
        e(f"s_mov_b32 s{b+2}, {nbytes}"); e(f"s_mov_b32 s{b+3}, 0x20000")

    vQ, vL16, vTag, vScl, vFl, vDst, vJunk = 240, 241, 242, 244, 248, 249, 250
    R, O = 128, 160
    vAo, vPoll = 16, 24
    full = lambda: e("s_mov_b64 exec, -1")
    m56 = lambda: e(f"s_mov_b64 exec, s[{sM56}:{sM56+1}]")

    e("s_cmp_ge_u32 s2, 256")
    e("s_cbranch_scc1 L_end")
    e("s_load_dwordx8 s[4:11], s[0:1], 0")
    e("s_load_dwordx4 s[12:15], s[0:1], 32")
    e("s_load_dwordx2 s[34:35], s[0:1], 48")
    if ST: e(f"v_mov_b32 v{vSt}, 0")
    stamp(0, True); stamp(2)
    e("v_lshrrev_b32 v1, 6, v0")
    e("v_and_b32 v0, 63, v0")
    e(f"v_readfirstlane_b32 s{sW}, v1")
    e(f"s_and_b32 s{sT0}, s2, 7")
    e(f"s_lshr_b32 s{sT1}, s2, 3")
    e(f"s_and_b32 s{sM0}, s{sT1}, 7")
    e(f"s_add_u32 s{sA}, s{sM0}, s{sT0}")
    e(f"s_and_b32 s{sA}, s{sA}, 7")
    e(f"s_lshr_b32 s{sT1}, s{sT1}, 3")
    e(f"s_lshl_b32 s{sT0}, s{sT0}, 2")
    e(f"s_add_u32 s{sNT}, s{sT0}, s{sT1}")
    e(f"s_lshl_b32 s{sM0}, s{sM0}, 8")
    e(f"s_and_b32 s{sJ}, s{sW}, 3")
    e(f"s_lshr_b32 s{sMode}, s{sW}, 2")
    e(f"v_lshlrev_b32 v{vL16}, 4, v0")
    e("v_cmp_le_u32 vcc, 28, v0")
    e(f"v_mov_b32 v2, {2*14336 - 448}")
    e("v_mov_b32 v3, 224")
    e("v_cndmask_b32 v2, 0, v2, vcc")
    e("v_cndmask_b32 v3, 0, v3, vcc")
    e(f"v_add_u32 v{vQ}, v2, v{vL16}")
    e(f"v_lshlrev_b32 v{vFl}, 3, v0")
    e(f"v_sub_u32 v3, v{vFl}, v3")
    e("v_lshlrev_b32 v4, 1, v0")
    e(f"v_mov_b32 v5, {T_OFF}")
    e(f"s_mov_b32 s{sM56}, -1")
    e(f"s_mov_b32 s{sM56+1}, 0x00ffffff")
    e(f"s_lshl_b32 s{sSt}, s{sA}, 1")
    e(f"s_add_u32 s{sSt}, s{sSt}, s{sMode}")
    e(f"s_mul_i32 s{sSlot}, s{sMode}, {SLOT}")
    e(f"s_mul_i32 s{sWbase}, s{sNT}, {16*B_SLOT}")
    e(f"s_mul_i32 s{sBm0}, s{sJ}, 3584")
    e(f"s_mul_i32 s{sT3}, s{sNT}, 224")
    def calc_prod():
        e(f"s_lshl_b32 s{sQoff}, s{sSt}, 2")
        e(f"s_add_u32 s{sQoff}, s{sQoff}, s{sJ}")
        e(f"s_mul_i32 s{sQoff}, s{sQoff}, {16*14336}")
        e(f"s_mul_i32 s{sT0}, s{sNT}, 448")
        e(f"s_add_u32 s{sQoff}, s{sQoff}, s{sT0}")
    calc_prod()
    e("s_waitcnt lgkmcnt(0)")
    if opts.get("cpf", 0):
        e("s_getpc_b64 s[62:63]")
        e("s_and_b32 s62, s62, 0xffffff00")
        e(f"s_lshr_b32 s{sT0}, s2, 3")
        e(f"s_lshl_b32 s{sT0}, s{sT0}, 3")
        e(f"s_add_u32 s{sT0}, s{sT0}, s{sW}")
        e(f"s_lshl_b32 s{sT0}, s{sT0}, 6")
        e(f"s_min_u32 s{sT0}, s{sT0}, {opts.get('cend', 7600)}")
        e(f"s_load_dword s94, s[62:63], s{sT0}")
    srd(SQ, 6, 1024 * 3584 * 4)
    srd(SC, 8, 32)
    srd(SS, 10, 3584 * 2)
    srd(SWs, 34, WS_BYTES, W_OFF)
    srd(SX, 4, 2048 * 1024 * 2)
    def small(vm):
        vm.issue("cb", f"buffer_load_ushort v6, v4, s[{SC}:{SC+3}], 0 offen")
        vm.issue("am", f"buffer_load_dwordx2 v[14:15], v3, s[{SS}:{SS+3}], s{sT3} offen")
        vm.issue("T", f"buffer_load_dwordx2 {vr(vTag,2)}, v5, s[{SWs}:{SWs+3}], 0 offen sc1")
    def qload(vm, n):
        i, rr = n >> 1, n & 1
        row = 8 * (i & 1) + 4 * (i >> 1) + rr
        e(f"s_add_u32 s{sT0}, s{sQoff}, {row*14336}")
        vm.issue(f"q{n}", f"buffer_load_dwordx4 {vr(R+4*n,4)}, v{vQ}, s[{SQ}:{SQ+3}], s{sT0} offen{aux(opts,'qld','nt')}")
    def calc_dst():
        e(f"s_add_u32 s{sT1}, s{sSlot}, s{sBm0}")
        e(f"s_add_u32 s{sT1}, s{sT1}, {A_SLOT}")
        e(f"v_add_u32 v{vDst}, s{sT1}, v{vL16}")
    def consts():
        e(f"s_lshl_b32 s{sLut}, s{sW}, 6")
        e(f"s_add_u32 s{sLut}, s{sLut}, {LUT_OFF}")
        e(f"s_lshl_b32 s{sFl}, s{sNT}, 9")
        e(f"s_add_u32 s{sFl}, s{sFl}, {FL_OFF}")
        e(f"s_mul_i32 s{sImg}, s{sSt}, {B_SLOT}")
        e(f"s_add_u32 s{sImg}, s{sImg}, s{sWbase}")
        e(f"s_add_u32 s{sImg}, s{sImg}, s{sBm0}")
        e(f"s_lshl_b32 s{sPub}, s{sSt}, 2")
        e(f"s_add_u32 s{sPub}, s{sPub}, s{sJ}")
        e(f"s_lshl_b32 s{sPub}, s{sPub}, 3")
        e(f"s_add_u32 s{sPub}, s{sPub}, s{sFl}")
        e(f"s_getreg_b32 s{sXcc}, hwreg(HW_REG_XCC_ID, 0, 4)")
        calc_dst()
    def lut_init(vm):
        vm.wait(["cb", "am", "T"])
        e("v_lshlrev_b32 v6, 16, v6")
        e(f"v_lshl_add_u32 v7, v0, 2, s{sLut}")
        e("s_mov_b64 exec, 0xffff")
        e("ds_write_b32 v7, v6")
        full()
        e(f"v_lshlrev_b32 v{vScl}, 16, v14")
        e(f"v_and_b32 v{vScl+1}, 0xffff0000, v14")
        e(f"v_lshlrev_b32 v{vScl+2}, 16, v15")
        e(f"v_and_b32 v{vScl+3}, 0xffff0000, v15")
        e(f"s_mov_b32 s{sT0}, 1664525")
        e(f"s_mov_b32 s{sT1}, 22695477")
        e(f"v_mul_lo_u32 v{vTag}, v{vTag}, s{sT0}")
        e(f"v_mul_lo_u32 v{vTag+1}, v{vTag+1}, s{sT1}")
        e(f"v_add_u32 v{vTag}, 1013904223, v{vTag}")
        e(f"v_add_u32 v{vTag+1}, 0x3c6ef35f, v{vTag+1}")
        e(f"v_and_b32 v{vTag}, -16, v{vTag}")
        e(f"v_or_b32 v{vTag}, s{sXcc}, v{vTag}")
    def unit(vm, i):
        vm.wait([f"q{2*i}", f"q{2*i+1}"])
        for n in range(8):
            v = R + 8 * i + n
            e(f"v_lshl_add_u32 v{v}, v{v}, 2, s{sLut}")
            e(f"ds_read_b32 v{v}, v{v}")
        for rr in range(2):
            e(f"s_waitcnt lgkmcnt({4 - 4*rr})")
            b = R + 8 * i + 4 * rr
            e(f"v_pk_mul_f32 {vr(b,2)}, {vr(b,2)}, {vr(vScl,2)}")
            e(f"v_pk_mul_f32 {vr(b+2,2)}, {vr(b+2,2)}, {vr(vScl+2,2)}")
            e(f"v_cvt_pk_bf16_f32 v{O+4*i+2*rr}, v{b}, v{b+1}")
            e(f"v_cvt_pk_bf16_f32 v{O+4*i+2*rr+1}, v{b+2}, v{b+3}")
        vm.issue(f"st{i}", f"buffer_store_dwordx4 {vr(O+4*i,4)}, v{vL16}, s[{SWs}:{SWs+3}], s{sImg} offen offset:{896*i}{WST}")
        e(f"ds_write_b128 v{vDst}, {vr(O+4*i,4)} offset:{896*i}")
    def publish(vm=None):
        e("s_mov_b64 exec, 1")
        t = f"buffer_store_dwordx2 {vr(vTag,2)}, v{vFl}, s[{SWs}:{SWs+3}], s{sPub} offen{WST}"
        if vm: vm.issue("flag", t)
        else: e(t)
        full()
    e(f"s_cmp_eq_u32 s{sMode}, 1")
    e("s_cbranch_scc1 L_P")

    vm = VM(e)
    small(vm)
    stamp(11)
    m56()
    for n in range(8): qload(vm, n)
    full()
    TOUCH = opts.get("touch", 1)
    if TOUCH == 3:
        e(f"s_and_b32 s{sT0}, s{sNT}, 3")
        e(f"s_lshl_b32 s{sT0}, s{sT0}, 2")
        e(f"s_add_u32 s{sT0}, s{sT0}, s{sJ}")
        e(f"s_lshl_b32 s{sT0}, s{sT0}, 4")
        e(f"s_add_u32 s{sT0}, s{sT0}, s{sM0}")
        e(f"s_lshl_b32 s{sT0}, s{sT0}, 11")
        e(f"s_lshl_b32 s{sT1}, s{sA}, 8")
        e(f"s_add_u32 s{sT0}, s{sT0}, s{sT1}")
        e("v_lshrrev_b32 v8, 4, v0")
        e("v_and_b32 v9, 15, v0")
        e("v_lshlrev_b32 v8, 11, v8")
        e("v_lshl_add_u32 v8, v9, 4, v8")
        for z in range(4):
            vm.issue(f"tch{z}", f"buffer_load_dwordx4 v[252:255], v8, s[{SX}:{SX+3}], s{sT0} offen")
            if z < 3: e(f"s_add_u32 s{sT0}, s{sT0}, 8192")
    elif TOUCH:
        e(f"s_and_b32 s{sT0}, s{sNT}, 3")
        e(f"s_lshl_b32 s{sT0}, s{sT0}, 6")
        e(f"s_add_u32 s{sT0}, s{sT0}, s{sM0}")
        e(f"s_lshl_b32 s{sT0}, s{sT0}, 11")
        e(f"s_add_u32 s{sT1}, s{sA}, s{sJ}")
        e(f"s_add_u32 s{sT1}, s{sT1}, 7")
        e(f"s_and_b32 s{sT1}, s{sT1}, 7")
        e(f"s_lshl_b32 s{sT1}, s{sT1}, 1")
        e(f"s_add_u32 s{sT2}, s{sSt}, s{sJ}")
        e(f"s_cmp_lt_u32 s{sJ}, 2")
        e(f"s_cselect_b32 s{sT1}, s{sT2}, s{sT1}")
        e(f"s_lshl_b32 s{sT1}, s{sT1}, 7")
        e(f"s_add_u32 s{sT0}, s{sT0}, s{sT1}")
        e("v_lshlrev_b32 v8, 11, v0")
        vm.issue("tch", f"buffer_load_dword v{vJunk}, v8, s[{SX}:{SX+3}], s{sT0} offen")
        if TOUCH == 2:
            vm.issue("tch2", f"buffer_load_dword v{vJunk}, v8, s[{SX}:{SX+3}], s{sT0} offen offset:64")
    consts()
    ACC = 16
    F0, F1 = 128, 172
    vA0b, vA1b, vB0b, vA0, vA1, vB0, vB1 = 229, 230, 231, 232, 233, 234, 235
    vStgW, vStgR, vOut = 236, 237, 238
    def acc(mi, t): return ACC + (mi * 7 + t) * 4
    def fx(F, mi): return F + mi * 4
    def fw(F, t): return F + 16 + t * 4
    srd(SO, 12, 2048 * 3584 * 2)
    e("v_lshrrev_b32 v9, 4, v0")
    e("v_and_b32 v10, 15, v0")
    e("v_lshrrev_b32 v11, 1, v10")
    e("v_xor_b32 v11, v11, v9")
    e("v_lshlrev_b32 v11, 4, v11")
    e("v_lshl_add_u32 v11, v10, 7, v11")
    e("v_xor_b32 v12, 64, v11")
    e(f"s_lshl_b32 s{sT2}, s{sW}, 13")
    e(f"v_add_u32 v{vA0b}, s{sT2}, v11")
    e(f"v_add_u32 v{vA1b}, s{sT2}, v12")
    e(f"v_mov_b32 v{vA0}, v{vA0b}")
    e(f"v_mov_b32 v{vA1}, v{vA1b}")
    e("v_bfe_u32 v11, v0, 3, 2")
    e("v_lshrrev_b32 v12, 5, v0")
    e("v_lshl_add_u32 v11, v12, 3, v11")
    e("v_mul_u32_u24 v11, 448, v11")
    e("v_and_b32 v12, 3, v0")
    e("v_lshl_add_u32 v11, v12, 4, v11")
    e("v_bfe_u32 v12, v0, 2, 1")
    e("v_lshl_add_u32 v11, v12, 3, v11")
    e(f"v_add_u32 v{vB0b}, {A_SLOT}, v11")
    e(f"v_mov_b32 v{vB0}, v{vB0b}")
    e(f"v_mov_b32 v{vB1}, v{vB0b}")
    e(f"s_mul_i32 s{sT2}, s{sW}, {64*STG_STRIDE}")
    e(f"v_mul_u32_u24 v13, {STG_STRIDE}, v10")
    e(f"v_lshl_add_u32 v13, v9, 3, v13")
    e(f"v_add_u32 v{vStgW}, s{sT2}, v13")
    e(f"v_mul_u32_u24 v13, {STG_STRIDE}, v9")
    e(f"v_lshl_add_u32 v13, v10, 4, v13")
    e(f"v_add_u32 v{vStgR}, s{sT2}, v13")
    e(f"s_lshl_b32 s{sT2}, s{sW}, 6")
    e(f"s_add_u32 s{sT2}, s{sT2}, s{sM0}")
    e(f"s_mul_i32 s{sT2}, s{sT2}, 7168")
    e(f"s_add_u32 s{sT2}, s{sT2}, s{sT3}")
    e(f"v_mul_u32_u24 v13, 7168, v9")
    e(f"v_lshl_add_u32 v13, v10, 4, v13")
    e(f"v_add_u32 v{vOut}, s{sT2}, v13")
    e(f"s_mov_b32 s{sMaskS}, 0x3fff3fff")
    e(f"s_mov_b32 s{sMaskS+1}, 0x3fff3fff")
    for r in range(112):
        e(f"v_mov_b32 v{ACC+r}, 0")
    lut_init(vm)
    m56()
    for i in range(4):
        unit(vm, i)
        if i == 0: stamp(12)
    full()
    stamp(3)
    PUBI = opts.get("pubi", -1)
    if PUBI < 0:
        e("s_waitcnt vmcnt(0)")
        publish()
        stamp(13)
    e(f"s_mov_b32 s{sI}, 0")
    e("s_waitcnt lgkmcnt(0)")
    stamp(4)
    e("s_barrier                               ; B_-1")
    stamp(5)
    def reads(F, va, vb, h):
        r = []
        for k in range(7):
            r.append(f"ds_read_b64_tr_b16 {vr(fw(F,k),2)}, v{vb} offset:{64*k + h*16*448}")
            r.append(f"ds_read_b64_tr_b16 {vr(fw(F,k)+2,2)}, v{vb} offset:{64*k + h*16*448 + 4*448}")
            if k < 4:
                r.append(f"ds_read_b128 {vr(fx(F,k),4)}, v{va} offset:{2048*k}")
        return r
    def mfmas(F):
        order = [((mi if t % 2 == 0 else 3 - mi), t) for t in range(7) for mi in range(4)]
        return [f"v_mfma_f32_16x16x32_bf16 {vr(acc(mi,t),4)}, {vr(fw(F,t),4)}, {vr(fx(F,mi),4)}, {vr(acc(mi,t),4)}" for mi, t in order]
    for s in reads(F0, vA0, vB0, 0): e(s)
    e("s_waitcnt lgkmcnt(0)")
    WBI = opts.get("wbi", -1)
    if WBI >= 0:
        e(f"s_lshr_b32 s{sT0}, s2, 3")
        e(f"s_or_b32 s{sT0}, s{sT0}, s{sW}")
        e(f"s_cmp_eq_u32 s{sT0}, 0")
        e(f"s_cselect_b32 s{sT3}, {WBI}, 99")
    g.label("L_cons_loop")
    def block(Fm, rd, extra):
        rd = list(rd); extra = list(extra)
        for ins in mfmas(Fm):
            e(ins)
            if rd: e(rd.pop(0))
            elif extra: e(extra.pop(0))
        assert not rd and not extra
    extra0 = [
        f"s_add_u32 s{sSlot}, s{sSlot}, {SLOT}",
        f"s_cmp_eq_u32 s{sSlot}, {NS*SLOT}",
        f"s_cselect_b32 s{sSlot}, 0, s{sSlot}",
        f"v_add_u32 v{vA0}, s{sSlot}, v{vA0b}",
        f"v_add_u32 v{vB0}, s{sSlot}, v{vB0b}",
    ]
    if PUBI >= 0: extra0.append(f"s_cmp_lg_u32 s{sI}, {PUBI}")
    elif WBI >= 0: extra0.append(f"s_cmp_lg_u32 s{sI}, s{sT3}")
    block(F0, reads(F1, vA1, vB1, 1), extra0)
    if PUBI >= 0:
        e("s_cbranch_scc1 L_cons_nopub")
        e("s_waitcnt vmcnt(0)")
        publish()
        g.label("L_cons_nopub")
    elif WBI >= 0:
        e("s_cbranch_scc1 L_cons_nopub")
        e("buffer_wbl2 sc1")
        g.label("L_cons_nopub")
    e("s_waitcnt lgkmcnt(0)")
    stamp((f"s{sI}", 16), lvl=2)
    e("s_barrier                               ; B_s")
    stamp((f"s{sI}", 32), lvl=2)
    extra1 = [
        f"v_add_u32 v{vA1}, s{sSlot}, v{vA1b}",
        f"v_mov_b32 v{vB1}, v{vB0}",
        f"s_add_u32 s{sI}, s{sI}, 1",
        f"s_cmp_lt_u32 s{sI}, 16",
    ]
    block(F1, reads(F0, vA0, vB0, 0), extra1)
    e("s_waitcnt lgkmcnt(0)")
    e("s_cbranch_scc1 L_cons_loop")
    stamp(6)
    e("s_nop 7")
    OUTR = F1
    for mi in range(4):
        o = OUTR + 14 * (mi & 1)
        for t in range(7):
            a = acc(mi, t)
            for d in range(2):
                e(f"v_cvt_pk_bf16_f32 v{o+2*t+d}, v{a+2*d}, v{a+2*d+1}")
            e(f"ds_write_b64 v{vStgW}, {vr(o+2*t,2)} offset:{mi*16*STG_STRIDE + 32*t}")
        e(f"s_mov_b64 exec, s[{sMaskS}:{sMaskS+1}]")
        rb = acc(mi, 0)
        for z in range(4):
            e(f"ds_read_b128 {vr(rb+4*z,4)}, v{vStgR} offset:{(mi*16+4*z)*STG_STRIDE}")
        for z in range(4):
            e(f"s_mov_b32 s{sT0}, {(mi*16+4*z)*7168}")
            e(f"s_waitcnt lgkmcnt({3-z})")
            e(f"buffer_store_dwordx4 {vr(rb+4*z,4)}, v{vOut}, s[{SO}:{SO+3}], s{sT0} offen{aux(opts,'auxs')}")
        full()
        if mi == 0: stamp(7)
    stamp_out()
    e("s_endpgm")

    g.label("L_P")
    vm = VM(e)
    sK0, sK2 = 90, 91
    def p_setup():
        e("v_lshrrev_b32 v8, 3, v0")
        e("v_lshrrev_b32 v9, 4, v0")
        e("v_and_b32 v10, 7, v0")
        e("v_xor_b32 v10, v10, v9")
        e("v_xor_b32 v11, 4, v10")
        e(f"s_lshl_b32 s{sT0}, s{sJ}, 6")
        e(f"s_add_u32 s{sT0}, s{sT0}, s{sM0}")
        e(f"s_lshl_b32 s{sT0}, s{sT0}, 11")
        e(f"v_lshl_add_u32 v8, v8, 11, s{sT0}")
        e("v_lshl_add_u32 v10, v10, 4, v8")
        e("v_lshl_add_u32 v11, v11, 4, v8")
        for u in range(8):
            e(f"v_add_u32 v{vAo+u}, {16384*u - 1024*(u&3)}, v{10 + (u&1)}")
        e(f"s_lshl_b32 s{sAm0}, s{sJ}, 13")
        e(f"s_lshl_b32 s{sK0}, s{sA}, 8")
        e(f"s_add_u32 s{sAk}, s{sK0}, 128")
        e(f"s_add_u32 s{sT0}, s{sA}, 1")
        e(f"s_and_b32 s{sT0}, s{sT0}, 7")
        e(f"s_lshl_b32 s{sK2}, s{sT0}, 8")
        e(f"s_mov_b32 s{sNp}, {NPOLL}")
        consts()
    def xq(pos, quad):
        e(f"s_add_u32 m0, s{sAm0}, {pos*SLOT + 4096*quad}")
        e("s_nop 0")
        sk = (sK0, sAk, sK2)[pos]
        for u in range(4 * quad, 4 * quad + 4):
            off = f" offset:{1024*(u&3)}" if (u & 3) else ""
            vm.issue(f"x{pos}_{u}", f"buffer_load_dwordx4 v{vAo+u}, s[{SX}:{SX+3}], s{sk} offen{off} lds")
    def poll_issue(vm=None):
        t = f"buffer_load_dwordx2 {vr(vPoll,2)}, v{vFl}, s[{SWs}:{SWs+3}], s{sFl} offen sc1"
        if vm: vm.issue("poll", t)
        else: e(t)
    def poll_eval():
        e(f"v_cmp_eq_u64 s[{sRdy}:{sRdy+1}], {vr(vPoll,2)}, {vr(vTag,2)}")
    script = opts.get("ps", "sQSL0a1b2c3dMefpNF")
    cur = "full"
    def want(m):
        nonlocal cur
        if cur != m:
            (full if m == "full" else m56)(); cur = m
    for ch in script:
        if ch == "S": want("full"); p_setup()
        elif ch == "s": want("full"); small(vm); stamp(11)
        elif ch in "Qqr":
            want("m56")
            for n in {"Q": range(8), "q": range(4), "r": range(4, 8)}[ch]: qload(vm, n)
        elif ch == "L": want("full"); lut_init(vm)
        elif ch in "0123":
            want("m56"); unit(vm, int(ch))
            if ch == "0": stamp(12)
            if ch == "3": stamp(3)
        elif ch in "abcdef":
            want("full"); k = "abcdef".index(ch); xq(k >> 1, k & 1)
        elif ch == "M":
            vm.wait([f"x0_{u}" for u in range(8)]); stamp(4)
            e("s_barrier                               ; B_-1"); stamp(32)
        elif ch == "N":
            vm.wait([f"x1_{u}" for u in range(8)], " lgkmcnt(0)")
            e("s_barrier                               ; B_0"); stamp(33)
        elif ch == "p": want("full"); poll_issue(vm)
        elif ch == "F":
            want("full"); vm.wait([f"st{i}" for i in range(4)]); publish(vm); stamp(13)
        elif ch == "D":
            for _ in range(8): e("s_nop 15")
    want("full")
    e(f"s_lshr_b32 s{sSt}, s{sK2}, 7")
    e(f"s_lshl_b32 s{sBit}, s{sSt}, 2")
    e(f"s_add_u32 s{sBit}, s{sBit}, s{sJ}")
    e(f"s_mov_b32 s{sSlot}, {2*SLOT}")
    e(f"s_mov_b32 s{sC}, 2")
    e(f"s_mov_b32 s{sCnt}, 0")
    e(f"s_mov_b64 s[{sRdy}:{sRdy+1}], 0")
    vm.wait(["poll"])
    e("s_branch L_P_eval")
    g.label("L_P_loop")
    e(f"s_add_u32 s{sT0}, s{sA}, s{sC}")
    e(f"s_cmp_lt_u32 s{sC}, 9")
    e(f"s_cselect_b32 s{sT1}, 7, 0")
    e(f"s_cselect_b32 s{sT2}, 0, 1")
    e(f"s_add_u32 s{sT0}, s{sT0}, s{sT1}")
    e(f"s_and_b32 s{sT0}, s{sT0}, 7")
    e(f"s_lshl_b32 s{sT0}, s{sT0}, 1")
    e(f"s_add_u32 s{sSt}, s{sT0}, s{sT2}")
    e(f"s_lshl_b32 s{sAk}, s{sSt}, 7")
    e(f"s_lshl_b32 s{sBit}, s{sSt}, 2")
    e(f"s_add_u32 s{sBit}, s{sBit}, s{sJ}")
    e(f"s_mov_b32 s{sCnt}, 0")
    e(f"s_bitcmp1_b64 s[{sRdy}:{sRdy+1}], s{sBit}")
    e("s_cbranch_scc1 L_P_nopoll")
    poll_issue()
    g.label("L_P_nopoll")
    for u in range(8):
        if u == 0:
            e(f"s_add_u32 m0, s{sSlot}, s{sAm0}"); e("s_nop 0")
        if u == 4:
            e("s_add_u32 m0, m0, 4096"); e("s_nop 0")
        off = f" offset:{1024*(u&3)}" if (u & 3) else ""
        e(f"buffer_load_dwordx4 v{vAo+u}, s[{SX}:{SX+3}], s{sAk} offen{off} lds")
    e(f"s_bitcmp1_b64 s[{sRdy}:{sRdy+1}], s{sBit}")
    e("s_cbranch_scc1 L_P_ready")
    e("s_waitcnt vmcnt(8)")
    if not FB: poll_eval()
    e("s_nop 3")
    e(f"s_bitcmp1_b64 s[{sRdy}:{sRdy+1}], s{sBit}")
    e("s_cbranch_scc1 L_P_ready")
    e("s_barrier                               ; B_(c-2) early")
    g.label("L_P_poll")
    poll_issue()
    e("s_waitcnt vmcnt(0)")
    g.label("L_P_eval")
    if not FB: poll_eval()
    e(f"s_add_u32 s{sCnt}, s{sCnt}, 1")
    e("s_nop 3")
    e(f"s_bitcmp1_b64 s[{sRdy}:{sRdy+1}], s{sBit}")
    e("s_cbranch_scc1 L_P_ready")
    e(f"s_cmp_lt_u32 s{sCnt}, s{sNp}")
    e("s_cbranch_scc1 L_P_poll")
    e(f"s_mov_b32 s{sNp}, 0")
    e(f"s_mov_b32 s{sImg}, 0x7ff00000")
    calc_prod()
    calc_dst()
    vmf = VM(e)
    m56()
    for n in range(8): qload(vmf, n)
    for i in range(4): unit(vmf, i)
    full()
    e("s_waitcnt vmcnt(0) lgkmcnt(0)")
    e("s_branch L_P_next")
    g.label("L_P_ready")
    e(f"s_add_u32 s{sT1}, s{sSlot}, s{sBm0}")
    e(f"s_add_u32 m0, s{sT1}, {A_SLOT}")
    e(f"s_mul_i32 s{sWk}, s{sSt}, {B_SLOT}")
    e(f"s_add_u32 s{sWk}, s{sWk}, s{sWbase}")
    e(f"s_add_u32 s{sWk}, s{sWk}, s{sBm0}")
    for z in range(4):
        if z == 3: e("s_mov_b32 exec_hi, 0")
        off = f" offset:{1024*z}" if z else ""
        e(f"buffer_load_dwordx4 v{vL16}, s[{SWs}:{SWs+3}], s{sWk} offen{off} sc1 lds")
    e("s_mov_b32 exec_hi, -1")
    stamp((f"s{sC}", 47), lvl=2)
    e(f"s_cmp_lg_u32 s{sCnt}, 0")
    e("s_cbranch_scc1 L_P_next")
    e("s_waitcnt vmcnt(12)")
    e("s_barrier                               ; B_(c-2)")
    g.label("L_P_next")
    e(f"s_add_u32 s{sSlot}, s{sSlot}, {SLOT}")
    e(f"s_cmp_eq_u32 s{sSlot}, {NS*SLOT}")
    e(f"s_cselect_b32 s{sSlot}, 0, s{sSlot}")
    e(f"s_add_u32 s{sC}, s{sC}, 1")
    e(f"s_cmp_lt_u32 s{sC}, 16")
    e("s_cbranch_scc1 L_P_loop")
    e("s_waitcnt vmcnt(0)")
    e("s_barrier                               ; B_14")
    e(f"s_cmp_lg_u32 s{sJ}, 0")
    e("s_cbranch_scc1 L_P_b15")
    srd(SD, 14, 256)
    e("s_mov_b64 exec, 1")
    e("v_mov_b32 v26, 1")
    e(f"buffer_atomic_add v26, v{vFl}, s[{SD}:{SD+3}], 0 offen sc0")
    e("s_barrier                               ; B_15")
    e("s_waitcnt vmcnt(0)")
    e("v_readfirstlane_b32 s40, v26")
    e("s_cmp_lg_u32 s40, 255")
    e("s_cbranch_scc1 L_P_fin")
    e(f"v_mov_b32 v5, {T_OFF}")
    e(f"buffer_store_dwordx2 {vr(vTag,2)}, v5, s[{SWs}:{SWs+3}], 0 offen sc1")
    e("s_branch L_P_fin")
    g.label("L_P_b15")
    e("s_barrier                               ; B_15")
    g.label("L_P_fin")
    stamp_out()
    g.label("L_end")
    e("s_endpgm")

    out = HEADER
    out += f"; @launch grid=(256,1,1) block=(512,1,1) lds={LDS_TOTAL}\n"
    out += '.amdgcn_target "amdgcn-amd-amdhsa--gfx950"\n.text\n'
    out += f".globl {NAME}_kernel\n.p2align 8\n.type {NAME}_kernel,@function\n{NAME}_kernel:\n" + "\n".join(g.lines) + "\n"
    out += f""".section .rodata,"a"
.p2align 6
.amdhsa_kernel {NAME}_kernel
  .amdhsa_next_free_vgpr 256
  .amdhsa_next_free_sgpr 96
  .amdhsa_accum_offset 256
  .amdhsa_group_segment_fixed_size 0
  .amdhsa_kernarg_size 56
  .amdhsa_user_sgpr_count 2
  .amdhsa_user_sgpr_kernarg_segment_ptr 1
  .amdhsa_system_sgpr_workgroup_id_x 1
  .amdhsa_float_denorm_mode_32 3
.end_amdhsa_kernel
"""
    return out

if __name__ == "__main__":
    path = sys.argv[1] if len(sys.argv) > 1 else f"cdna_kernels/{NAME}.s"
    opts = {}
    for a in sys.argv[2:]:
        k, v = a.split("=")
        opts[k] = int(v) if v.lstrip("-").isdigit() and k != "ps" else v
    open(path, "w").write(build(opts))
    print("wrote", path)
```

```python
import sys

NAME = "standalone__normalfloat_lut_codebook_lookup__prompt"
HEADER = """; Kernarg layout for this problem (56 bytes, ptrs only, base s[0:1]):
"""
A_SLOT = 32768
B_SLOT = 14336
SLOT = A_SLOT + B_SLOT
NS = 3
LUT_OFF = NS * SLOT
LDS_TOTAL = LUT_OFF + 512
STG_STRIDE = 240
W_OFF = 1 << 24
W_BYTES = 32 * 16 * B_SLOT
FL_OFF = W_BYTES
T_OFF = FL_OFF + 32 * 512
WS_BYTES = T_OFF + 128

class Gen:
    def __init__(self): self.lines = []
    def e(self, s): self.lines.append("    " + s)
    def label(self, s): self.lines.append(s + ":")

def vr(b, n=1): return f"v{b}" if n == 1 else f"v[{b}:{b+n-1}]"
def aux(opts, k, default=""):
    v = opts.get(k, default)
    return (" " + v.replace("_", " ")) if v and v != "none" else ""

class VM:
    def __init__(self, e): self.e = e; self.ops = []
    def issue(self, name, text): self.e(text); self.ops.append(name)
    def wait(self, names, extra=""):
        last = max(i for i, n in enumerate(self.ops) if n in names)
        assert all(n in self.ops for n in names), names
        y = len(self.ops) - 1 - last
        assert y <= 63
        self.e(f"s_waitcnt vmcnt({y}){extra}")

def build(opts):
    g = Gen(); e = g.e
    ST = opts.get("stamps", 0)
    NPOLL = opts.get("npoll", 64)
    FB = opts.get("forcefb", 0)
    WST = aux(opts, "wst")
    SX, SWs, SO, SQ, SC, SS, SD = 16, 20, 24, 28, 64, 68, 84
    sM0, sA, sW, sNT = 36, 37, 38, 39
    sT0, sT1, sT2, sT3 = 40, 41, 42, 43
    sI, sSlot, sAk, sWk, sAm0, sBm0 = 44, 45, 46, 47, 48, 49
    sM56, sRdy, sMaskS = 50, 52, 54
    sC, sMode, sJ, sWbase = 56, 57, 58, 59
    sQoff, sLut, sSt, sFl, sCnt, sBit, sNp, sXcc = 72, 73, 74, 75, 76, 77, 78, 79
    sPub, sImg = 88, 89
    vSt = 251
    def stamp(idx, real=False, lvl=1):
        if not ST or (lvl == 2 and ST != 1): return
        e(("s_memrealtime" if real else "s_memtime") + " s[60:61]")
        e("s_waitcnt lgkmcnt(0)")
        if isinstance(idx, int):
            e(f"v_writelane_b32 v{vSt}, s60, {idx}")
        else:
            e(f"s_add_u32 m0, {idx[0]}, {idx[1]}"); e("s_nop 0")
            e(f"v_writelane_b32 v{vSt}, s60, m0")
    def stamp_out():
        if not ST: return
        stamp(9); e("s_waitcnt vmcnt(0)"); stamp(10); stamp(1, True)
        e("s_mov_b64 exec, -1")
        e("s_mov_b32 s80, s34"); e("s_and_b32 s81, s35, 0xffff"); e("s_mov_b32 s82, 0x100000"); e("s_mov_b32 s83, 0x20000")
        e("s_lshl_b32 s62, s2, 3"); e(f"s_add_u32 s62, s62, s{sW}"); e("s_lshl_b32 s62, s62, 8")
        e("v_lshlrev_b32 v1, 2, v0")
        e(f"buffer_store_dword v{vSt}, v1, s[80:83], s62 offen")
    def srd(b, lo, nbytes, add=0):
        if add:
            e(f"s_add_u32 s{b}, s{lo}, {add}"); e(f"s_addc_u32 s{b+1}, s{lo+1}, 0"); e(f"s_and_b32 s{b+1}, s{b+1}, 0xffff")
        else:
            e(f"s_mov_b32 s{b}, s{lo}"); e(f"s_and_b32 s{b+1}, s{lo+1}, 0xffff")
        e(f"s_mov_b32 s{b+2}, {nbytes}"); e(f"s_mov_b32 s{b+3}, 0x20000")

    vQ, vL16, vTag, vScl, vFl, vDst, vJunk = 240, 241, 242, 244, 248, 249, 250
    R, O = 128, 160
    vAo, vPoll = 16, 24
    full = lambda: e("s_mov_b64 exec, -1")
    m56 = lambda: e(f"s_mov_b64 exec, s[{sM56}:{sM56+1}]")

    e("s_cmp_ge_u32 s2, 256")
    e("s_cbranch_scc1 L_end")
    if opts.get("pad", 0): e("s_memrealtime s[96:97]")
    e("s_load_dwordx8 s[4:11], s[0:1], 0")
    e("s_load_dwordx4 s[12:15], s[0:1], 32")
    e("s_load_dwordx2 s[34:35], s[0:1], 48")
    if ST: e(f"v_mov_b32 v{vSt}, 0")
    stamp(0, True); stamp(2)
    e("v_lshrrev_b32 v1, 6, v0")
    e("v_and_b32 v0, 63, v0")
    e(f"v_readfirstlane_b32 s{sW}, v1")
    e(f"s_and_b32 s{sT0}, s2, 7")
    e(f"s_lshr_b32 s{sT1}, s2, 3")
    e(f"s_and_b32 s{sM0}, s{sT1}, 7")
    e(f"s_add_u32 s{sA}, s{sM0}, s{sT0}")
    e(f"s_and_b32 s{sA}, s{sA}, 7")
    e(f"s_lshr_b32 s{sT1}, s{sT1}, 3")
    e(f"s_lshl_b32 s{sT0}, s{sT0}, 2")
    e(f"s_add_u32 s{sNT}, s{sT0}, s{sT1}")
    e(f"s_lshl_b32 s{sM0}, s{sM0}, 8")
    e(f"s_and_b32 s{sJ}, s{sW}, 3")
    e(f"s_lshr_b32 s{sMode}, s{sW}, 2")
    e(f"v_lshlrev_b32 v{vL16}, 4, v0")
    e("v_cmp_le_u32 vcc, 28, v0")
    e(f"v_mov_b32 v2, {2*14336 - 448}")
    e("v_mov_b32 v3, 224")
    e("v_cndmask_b32 v2, 0, v2, vcc")
    e("v_cndmask_b32 v3, 0, v3, vcc")
    e(f"v_add_u32 v{vQ}, v2, v{vL16}")
    e(f"v_lshlrev_b32 v{vFl}, 3, v0")
    e(f"v_sub_u32 v3, v{vFl}, v3")
    e("v_lshlrev_b32 v4, 1, v0")
    e(f"v_mov_b32 v5, {T_OFF}")
    e(f"s_mov_b32 s{sM56}, -1")
    e(f"s_mov_b32 s{sM56+1}, 0x00ffffff")
    e(f"s_lshl_b32 s{sSt}, s{sA}, 1")
    e(f"s_add_u32 s{sSt}, s{sSt}, s{sMode}")
    e(f"s_mul_i32 s{sSlot}, s{sMode}, {SLOT}")
    e(f"s_mul_i32 s{sWbase}, s{sNT}, {16*B_SLOT}")
    e(f"s_mul_i32 s{sBm0}, s{sJ}, 3584")
    e(f"s_mul_i32 s{sT3}, s{sNT}, 224")
    def calc_prod():
        e(f"s_lshl_b32 s{sQoff}, s{sSt}, 2")
        e(f"s_add_u32 s{sQoff}, s{sQoff}, s{sJ}")
        e(f"s_mul_i32 s{sQoff}, s{sQoff}, {16*14336}")
        e(f"s_mul_i32 s{sT0}, s{sNT}, 448")
        e(f"s_add_u32 s{sQoff}, s{sQoff}, s{sT0}")
    calc_prod()
    e("s_waitcnt lgkmcnt(0)")
    srd(SQ, 6, 1024 * 3584 * 4)
    srd(SC, 8, 32)
    srd(SS, 10, 3584 * 2)
    srd(SWs, 34, WS_BYTES, W_OFF)
    srd(SX, 4, 2048 * 1024 * 2)
    def small(vm):
        vm.issue("cb", f"buffer_load_ushort v6, v4, s[{SC}:{SC+3}], 0 offen")
        vm.issue("am", f"buffer_load_dwordx2 v[14:15], v3, s[{SS}:{SS+3}], s{sT3} offen")
        vm.issue("T", f"buffer_load_dwordx2 {vr(vTag,2)}, v5, s[{SWs}:{SWs+3}], 0 offen sc1")
    def qload(vm, n, R=R, sq=None):
        sq = sQoff if sq is None else sq
        i, rr = n >> 1, n & 1
        row = 8 * (i & 1) + 4 * (i >> 1) + rr
        e(f"s_add_u32 s{sT0}, s{sq}, {row*14336}")
        vm.issue(f"q{n}", f"buffer_load_dwordx4 {vr(R+4*n,4)}, v{vQ}, s[{SQ}:{SQ+3}], s{sT0} offen{aux(opts,'qld','nt')}")
    def calc_dst():
        e(f"s_add_u32 s{sT1}, s{sSlot}, s{sBm0}")
        e(f"s_add_u32 s{sT1}, s{sT1}, {A_SLOT}")
        e(f"v_add_u32 v{vDst}, s{sT1}, v{vL16}")
    def consts():
        e(f"s_lshl_b32 s{sLut}, s{sW}, 6")
        e(f"s_add_u32 s{sLut}, s{sLut}, {LUT_OFF}")
        e(f"s_lshl_b32 s{sFl}, s{sNT}, 9")
        e(f"s_add_u32 s{sFl}, s{sFl}, {FL_OFF}")
        e(f"s_mul_i32 s{sImg}, s{sSt}, {B_SLOT}")
        e(f"s_add_u32 s{sImg}, s{sImg}, s{sWbase}")
        e(f"s_add_u32 s{sImg}, s{sImg}, s{sBm0}")
        e(f"s_lshl_b32 s{sPub}, s{sSt}, 2")
        e(f"s_add_u32 s{sPub}, s{sPub}, s{sJ}")
        e(f"s_lshl_b32 s{sPub}, s{sPub}, 3")
        e(f"s_add_u32 s{sPub}, s{sPub}, s{sFl}")
        e(f"s_getreg_b32 s{sXcc}, hwreg(HW_REG_XCC_ID, 0, 4)")
        calc_dst()
    def lut_init(vm):
        vm.wait(["cb", "am", "T"])
        e("v_lshlrev_b32 v6, 16, v6")
        e(f"v_lshl_add_u32 v7, v0, 2, s{sLut}")
        e("s_mov_b64 exec, 0xffff")
        e("ds_write_b32 v7, v6")
        full()
        e(f"v_lshlrev_b32 v{vScl}, 16, v14")
        e(f"v_and_b32 v{vScl+1}, 0xffff0000, v14")
        e(f"v_lshlrev_b32 v{vScl+2}, 16, v15")
        e(f"v_and_b32 v{vScl+3}, 0xffff0000, v15")
        e(f"s_mov_b32 s{sT0}, 1664525")
        e(f"s_mov_b32 s{sT1}, 22695477")
        e(f"v_mul_lo_u32 v{vTag}, v{vTag}, s{sT0}")
        e(f"v_mul_lo_u32 v{vTag+1}, v{vTag+1}, s{sT1}")
        e(f"v_add_u32 v{vTag}, 1013904223, v{vTag}")
        e(f"v_add_u32 v{vTag+1}, 0x3c6ef35f, v{vTag+1}")
        e(f"v_and_b32 v{vTag}, -16, v{vTag}")
        e(f"v_or_b32 v{vTag}, s{sXcc}, v{vTag}")
    def unit_parts(i, R=R, O=O):
        p0, p1 = [], []
        for n in range(8):
            v = R + 8 * i + n
            p0.append(f"v_lshl_add_u32 v{v}, v{v}, 2, s{sLut}")
            p0.append(f"ds_read_b32 v{v}, v{v}")
        for rr in range(2):
            p1.append(f"s_waitcnt lgkmcnt({4 - 4*rr})")
            b = R + 8 * i + 4 * rr
            p1.append(f"v_pk_mul_f32 {vr(b,2)}, {vr(b,2)}, {vr(vScl,2)}")
            p1.append(f"v_pk_mul_f32 {vr(b+2,2)}, {vr(b+2,2)}, {vr(vScl+2,2)}")
            p1.append(f"v_cvt_pk_bf16_f32 v{O+4*i+2*rr}, v{b}, v{b+1}")
            p1.append(f"v_cvt_pk_bf16_f32 v{O+4*i+2*rr+1}, v{b+2}, v{b+3}")
        return p0 + p1
    def unit(vm, i, glob=True, WST=WST):
        vm.wait([f"q{2*i}", f"q{2*i+1}"])
        for t in unit_parts(i): e(t)
        if glob:
            vm.issue(f"st{i}", f"buffer_store_dwordx4 {vr(O+4*i,4)}, v{vL16}, s[{SWs}:{SWs+3}], s{sImg} offen offset:{896*i}{WST}")
        e(f"ds_write_b128 v{vDst}, {vr(O+4*i,4)} offset:{896*i}")
    def publish(vm=None):
        e("s_mov_b64 exec, 1")
        t = f"buffer_store_dwordx2 {vr(vTag,2)}, v{vFl}, s[{SWs}:{SWs+3}], s{sPub} offen{WST}"
        if vm: vm.issue("flag", t)
        else: e(t)
        full()
    CQ = opts.get("cq", 0)
    vm = VM(e)
    if CQ:
        small(vm); stamp(11); m56()
        for n in range(8): qload(vm, n)
        full()
        common_ops = list(vm.ops)
    e(f"s_cmp_eq_u32 s{sMode}, 1")
    e("s_cbranch_scc1 L_P")

    if not CQ:
        small(vm)
        stamp(11)
        m56()
    TOUCH = opts.get("touch", 0)
    def touch():
        e(f"s_and_b32 s{sT0}, s{sNT}, 3")
        e(f"s_lshl_b32 s{sT0}, s{sT0}, 2")
        e(f"s_add_u32 s{sT0}, s{sT0}, s{sJ}")
        e(f"s_lshl_b32 s{sT0}, s{sT0}, 4")
        e(f"s_add_u32 s{sT0}, s{sT0}, s{sM0}")
        e(f"s_lshl_b32 s{sT0}, s{sT0}, 11")
        e(f"s_lshl_b32 s{sT1}, s{sA}, 8")
        e(f"s_add_u32 s{sT2}, s{sT0}, s{sT1}")
        e("v_lshrrev_b32 v8, 4, v0")
        e("v_and_b32 v9, 15, v0")
        e("v_lshlrev_b32 v8, 11, v8")
        e("v_lshl_add_u32 v8, v9, 4, v8")
        for z in range(4):
            vm.issue(f"tch{z}", f"buffer_load_dwordx4 v[252:255], v8, s[{SX}:{SX+3}], s{sT2} offen")
            if z < 3: e(f"s_add_u32 s{sT2}, s{sT2}, 8192")
    if TOUCH == 4:
        full(); touch(); m56()
    if not CQ:
        for n in range(8): qload(vm, n)
        full()
    if TOUCH == 3: touch()
    consts()
    CFILL = opts.get("cfill", 0)
    def cfill(vm):
        for z in range(4):
            if z == 3: e("s_mov_b32 exec_hi, 0")
            t = f"buffer_load_dwordx4 v[252:255], v{vL16}, s[{SWs}:{SWs+3}], s{sImg} offen offset:{1024*z} sc1"
            if vm: vm.issue(f"cf{z}", t)
            else: e(t)
        e("s_mov_b32 exec_hi, -1")
    if CFILL == 2: cfill(vm)
    ACC = 16
    F0, F1 = 128, 172
    vA0b, vA1b, vB0b, vA0, vA1, vB0, vB1 = 229, 230, 231, 232, 233, 234, 235
    vStgW, vStgR, vOut = 236, 237, 238
    def acc(mi, t): return ACC + (mi * 7 + t) * 4
    def fx(F, mi): return F + mi * 4
    def fw(F, t): return F + 16 + t * 4
    srd(SO, 12, 2048 * 3584 * 2)
    e("v_lshrrev_b32 v9, 4, v0")
    e("v_and_b32 v10, 15, v0")
    e("v_lshrrev_b32 v11, 1, v10")
    e("v_xor_b32 v11, v11, v9")
    e("v_lshlrev_b32 v11, 4, v11")
    e("v_lshl_add_u32 v11, v10, 7, v11")
    e("v_xor_b32 v12, 64, v11")
    e(f"s_lshl_b32 s{sT2}, s{sW}, 13")
    e(f"v_add_u32 v{vA0b}, s{sT2}, v11")
    e(f"v_add_u32 v{vA1b}, s{sT2}, v12")
    e(f"v_mov_b32 v{vA0}, v{vA0b}")
    e(f"v_mov_b32 v{vA1}, v{vA1b}")
    e("v_bfe_u32 v11, v0, 3, 2")
    e("v_lshrrev_b32 v12, 5, v0")
    e("v_lshl_add_u32 v11, v12, 3, v11")
    e("v_mul_u32_u24 v11, 448, v11")
    e("v_and_b32 v12, 3, v0")
    e("v_lshl_add_u32 v11, v12, 4, v11")
    e("v_bfe_u32 v12, v0, 2, 1")
    e("v_lshl_add_u32 v11, v12, 3, v11")
    e(f"v_add_u32 v{vB0b}, {A_SLOT}, v11")
    e(f"v_mov_b32 v{vB0}, v{vB0b}")
    e(f"v_mov_b32 v{vB1}, v{vB0b}")
    e(f"s_mul_i32 s{sT2}, s{sW}, {64*STG_STRIDE}")
    e(f"v_mul_u32_u24 v13, {STG_STRIDE}, v10")
    e(f"v_lshl_add_u32 v13, v9, 3, v13")
    e(f"v_add_u32 v{vStgW}, s{sT2}, v13")
    e(f"v_mul_u32_u24 v13, {STG_STRIDE}, v9")
    e(f"v_lshl_add_u32 v13, v10, 4, v13")
    e(f"v_add_u32 v{vStgR}, s{sT2}, v13")
    e(f"s_lshl_b32 s{sT2}, s{sW}, 6")
    e(f"s_add_u32 s{sT2}, s{sT2}, s{sM0}")
    e(f"s_mul_i32 s{sT2}, s{sT2}, 7168")
    e(f"s_add_u32 s{sT2}, s{sT2}, s{sT3}")
    e(f"v_mul_u32_u24 v13, 7168, v9")
    e(f"v_lshl_add_u32 v13, v10, 4, v13")
    e(f"v_add_u32 v{vOut}, s{sT2}, v13")
    e(f"s_mov_b32 s{sMaskS}, 0x3fff3fff")
    e(f"s_mov_b32 s{sMaskS+1}, 0x3fff3fff")
    for r in range(112):
        e(f"v_mov_b32 v{ACC+r}, 0")
    lut_init(vm)
    m56()
    for i in range(4):
        unit(vm, i, WST=aux(opts, "wsta"))
        if i == 0: stamp(12)
    full()
    stamp(3)
    PUBI = opts.get("pubi", -1)
    if PUBI < 0:
        if CFILL == 3: cfill(vm)
        vm.wait(["st3"])
        publish()
        if CFILL == 1: cfill(None)
        stamp(13)
    e(f"s_mov_b32 s{sI}, 0")
    e("s_waitcnt lgkmcnt(0)")
    stamp(4)
    e("s_barrier                               ; B_-1")
    stamp(5); stamp(14, True)
    def reads(F, va, vb, h):
        r = []
        for k in range(7):
            r.append(f"ds_read_b64_tr_b16 {vr(fw(F,k),2)}, v{vb} offset:{64*k + h*16*448}")
            r.append(f"ds_read_b64_tr_b16 {vr(fw(F,k)+2,2)}, v{vb} offset:{64*k + h*16*448 + 4*448}")
            if k < 4:
                r.append(f"ds_read_b128 {vr(fx(F,k),4)}, v{va} offset:{2048*k}")
        return r
    def mfmas(F):
        order = [((mi if t % 2 == 0 else 3 - mi), t) for t in range(7) for mi in range(4)]
        return [f"v_mfma_f32_16x16x32_bf16 {vr(acc(mi,t),4)}, {vr(fw(F,t),4)}, {vr(fx(F,mi),4)}, {vr(acc(mi,t),4)}" for mi, t in order]
    for s in reads(F0, vA0, vB0, 0): e(s)
    e("s_waitcnt lgkmcnt(0)")
    WBI = opts.get("wbi", -1)
    if WBI >= 0:
        e(f"s_lshr_b32 s{sT0}, s2, 3")
        e(f"s_or_b32 s{sT0}, s{sT0}, s{sW}")
        e(f"s_cmp_eq_u32 s{sT0}, 0")
        e(f"s_cselect_b32 s{sT3}, {WBI}, 99")
    g.label("L_cons_loop")
    def block(Fm, rd, extra):
        rd = list(rd); extra = list(extra)
        for ins in mfmas(Fm):
            e(ins)
            if rd: e(rd.pop(0))
            elif extra: e(extra.pop(0))
        assert not rd and not extra
    extra0 = [
        f"s_add_u32 s{sSlot}, s{sSlot}, {SLOT}",
        f"s_cmp_eq_u32 s{sSlot}, {NS*SLOT}",
        f"s_cselect_b32 s{sSlot}, 0, s{sSlot}",
        f"v_add_u32 v{vA0}, s{sSlot}, v{vA0b}",
        f"v_add_u32 v{vB0}, s{sSlot}, v{vB0b}",
    ]
    if PUBI >= 0: extra0.append(f"s_cmp_lg_u32 s{sI}, {PUBI}")
    elif WBI >= 0: extra0.append(f"s_cmp_lg_u32 s{sI}, s{sT3}")
    block(F0, reads(F1, vA1, vB1, 1), extra0)
    if PUBI >= 0:
        e("s_cbranch_scc1 L_cons_nopub")
        e("s_waitcnt vmcnt(0)")
        publish()
        g.label("L_cons_nopub")
    elif WBI >= 0:
        e("s_cbranch_scc1 L_cons_nopub")
        e("buffer_wbl2 sc1")
        g.label("L_cons_nopub")
    e("s_waitcnt lgkmcnt(0)")
    stamp((f"s{sI}", 16), lvl=2)
    e("s_barrier                               ; B_s")
    stamp((f"s{sI}", 32), lvl=2)
    extra1 = [
        f"v_add_u32 v{vA1}, s{sSlot}, v{vA1b}",
        f"v_mov_b32 v{vB1}, v{vB0}",
        f"s_add_u32 s{sI}, s{sI}, 1",
        f"s_cmp_lt_u32 s{sI}, 16",
    ]
    block(F1, reads(F0, vA0, vB0, 0), extra1)
    e("s_waitcnt lgkmcnt(0)")
    e("s_cbranch_scc1 L_cons_loop")
    stamp(6); stamp(15, True)
    e("s_nop 7")
    OUTR = F1
    for mi in range(4):
        o = OUTR + 14 * (mi & 1)
        for t in range(7):
            a = acc(mi, t)
            for d in range(2):
                e(f"v_cvt_pk_bf16_f32 v{o+2*t+d}, v{a+2*d}, v{a+2*d+1}")
            e(f"ds_write_b64 v{vStgW}, {vr(o+2*t,2)} offset:{mi*16*STG_STRIDE + 32*t}")
        e(f"s_mov_b64 exec, s[{sMaskS}:{sMaskS+1}]")
        rb = acc(mi, 0)
        for z in range(4):
            e(f"ds_read_b128 {vr(rb+4*z,4)}, v{vStgR} offset:{(mi*16+4*z)*STG_STRIDE}")
        for z in range(4):
            e(f"s_mov_b32 s{sT0}, {(mi*16+4*z)*7168}")
            e(f"s_waitcnt lgkmcnt({3-z})")
            e(f"buffer_store_dwordx4 {vr(rb+4*z,4)}, v{vOut}, s[{SO}:{SO+3}], s{sT0} offen{aux(opts,'auxs','nt')}")
        full()
        if mi == 0: stamp(7)
    stamp_out()
    if opts.get("pad", 0):
        e("s_waitcnt vmcnt(0) lgkmcnt(0)")
        g.label("L_pad")
        e("s_memrealtime s[98:99]")
        e("s_waitcnt lgkmcnt(0)")
        e("s_sub_u32 s98, s98, s96")
        e(f"s_cmp_lt_u32 s98, {opts['pad']}")
        e("s_cbranch_scc1 L_pad")
    e("s_endpgm")

    g.label("L_P")
    vm = VM(e)
    if CQ: vm.ops = list(common_ops)
    sRet = 92
    sKp = [90, 91, 94, 95]
    WLD = aux(opts, "wld", "sc1")
    def p_setup():
        e("v_lshrrev_b32 v8, 3, v0")
        e("v_lshrrev_b32 v9, 4, v0")
        e("v_and_b32 v10, 7, v0")
        e("v_xor_b32 v10, v10, v9")
        e("v_xor_b32 v11, 4, v10")
        e(f"s_lshl_b32 s{sT0}, s{sJ}, 6")
        e(f"s_add_u32 s{sT0}, s{sT0}, s{sM0}")
        e(f"s_lshl_b32 s{sT0}, s{sT0}, 11")
        e(f"v_lshl_add_u32 v8, v8, 11, s{sT0}")
        e("v_lshl_add_u32 v10, v10, 4, v8")
        e("v_lshl_add_u32 v11, v11, 4, v8")
        for u in range(8):
            e(f"v_add_u32 v{vAo+u}, {16384*u - 1024*(u&3)}, v{10 + (u&1)}")
        e(f"s_lshl_b32 s{sAm0}, s{sJ}, 13")
        e(f"s_lshl_b32 s{sKp[0]}, s{sA}, 8")
        e(f"s_add_u32 s{sKp[1]}, s{sKp[0]}, 128")
        e(f"s_add_u32 s{sKp[2]}, s{sKp[0]}, 256")
        e(f"s_and_b32 s{sKp[2]}, s{sKp[2]}, 2047")
        e(f"s_add_u32 s{sKp[3]}, s{sKp[0]}, 512")
        e(f"s_and_b32 s{sKp[3]}, s{sKp[3]}, 2047")
        e(f"s_mov_b32 s{sNp}, {NPOLL}")
        e(f"s_mov_b64 s[{sRdy}:{sRdy+1}], 0")
        consts()
    def calc_pos2():
        e(f"s_lshl_b32 s{sBit}, s{sSt}, 2")
        e(f"s_add_u32 s{sBit}, s{sBit}, s{sJ}")
        e(f"s_mul_i32 s{sWk}, s{sSt}, {B_SLOT}")
        e(f"s_add_u32 s{sWk}, s{sWk}, s{sWbase}")
        e(f"s_add_u32 s{sWk}, s{sWk}, s{sBm0}")
    def xq(pos, quad):
        e(f"s_add_u32 m0, s{sAm0}, {(pos % NS)*SLOT + 4096*quad}")
        e("s_nop 0")
        for u in range(4 * quad, 4 * quad + 4):
            off = f" offset:{1024*(u&3)}" if (u & 3) else ""
            vm.issue(f"x{pos}_{u}", f"buffer_load_dwordx4 v{vAo+u}, s[{SX}:{SX+3}], s{sKp[pos]} offen{off} lds")
    nchk = [0]
    def wdma(vm, c):
        n = nchk[0]; nchk[0] += 1
        e(f"s_bitcmp1_b64 s[{sRdy}:{sRdy+1}], s{sBit}")
        e(f"s_cbranch_scc1 L_wok{n}")
        e(f"s_call_b64 s[{sRet}:{sRet+1}], L_slow")
        e(f"s_cbranch_scc0 L_wdone{n}")
        g.label(f"L_wok{n}")
        e(f"s_add_u32 s{sT1}, s{sSlot}, s{sBm0}")
        e(f"s_add_u32 m0, s{sT1}, {A_SLOT}")
        e("s_nop 0")
        for z in range(4):
            if z == 3: e("s_mov_b32 exec_hi, 0")
            off = f" offset:{1024*z}" if z else ""
            t = f"buffer_load_dwordx4 v{vL16}, s[{SWs}:{SWs+3}], s{sWk} offen{off}{WLD} lds"
            if vm: vm.issue(f"w{c}_{z}", t)
            else: e(t)
        e("s_mov_b32 exec_hi, -1")
        g.label(f"L_wdone{n}")
    def poll_issue(vm=None, name="poll"):
        t = f"buffer_load_dwordx2 {vr(vPoll,2)}, v{vFl}, s[{SWs}:{SWs+3}], s{sFl} offen sc1"
        if vm: vm.issue(name, t)
        else: e(t)
    def poll_eval():
        if not FB: e(f"v_cmp_eq_u64 s[{sRdy}:{sRdy+1}], {vr(vPoll,2)}, {vr(vTag,2)}")
        e("s_nop 3")
    def landed(c): return [f"x{c}_{u}" for u in range(8)] + ([f"w{c}_3"] if c > 1 else [])
    script = opts.get("ps", "sQSpL0a1b2c3dpMefvWNFghXO")
    if CQ: script = script.replace("s", "").replace("Q", "")
    cur = "full"
    npoll_ = [0]
    done = set()
    def want(m):
        nonlocal cur
        if cur != m:
            (full if m == "full" else m56)(); cur = m
    for ch in script:
        if ch == "S": want("full"); p_setup()
        elif ch == "s": want("full"); small(vm); stamp(11)
        elif ch in "Qqr":
            want("m56")
            for n in {"Q": range(8), "q": range(4), "r": range(4, 8)}[ch]: qload(vm, n)
        elif ch == "L": want("full"); lut_init(vm)
        elif ch in "0123":
            want("m56"); unit(vm, int(ch))
            if ch == "0": stamp(12)
            if ch == "3": stamp(3)
        elif ch in "abcdefgh":
            k = "abcdefgh".index(ch)
            if k >= 6: assert "N" in done
            want("full"); xq(k >> 1, k & 1)
        elif ch in "MNO":
            c = "MNO".index(ch)
            if ch == "N": assert all(u in done for u in "0123")
            vm.wait(landed(c), " lgkmcnt(0)" if ch == "N" else "")
            if ch == "M": stamp(4)
            e(f"s_barrier                               ; B_{c-1}"); stamp(32 + c)
        elif ch == "p":
            want("full"); npoll_[0] += 1; poll_issue(vm, f"poll{npoll_[0]}")
        elif ch == "v":
            want("full"); vm.wait([f"poll{npoll_[0]}"]); poll_eval()
        elif ch in "WX":
            c = 2 + "WX".index(ch)
            assert all(u in done for u in "0123")
            if ch == "X": assert "N" in done
            want("full")
            e(f"s_lshr_b32 s{sSt}, s{sKp[c]}, 7")
            calc_pos2()
            e(f"s_mov_b32 s{sSlot}, {(c % NS)*SLOT}")
            wdma(vm, c); stamp(47 + c)
        elif ch == "F":
            want("full"); vm.wait([f"st{i}" for i in range(4)]); publish(vm); stamp(13)
        elif ch == "U":
            e(f"s_and_b32 s{sT0}, s{sNT}, 3")
            e(f"s_cmp_eq_u32 s{sT0}, s{sJ}")
            e("s_cbranch_scc1 L_P_u")
            e(f"s_waitcnt vmcnt({opts.get('uw', 6)})")
            g.label("L_P_u")
        done.add(ch)
    assert all(u in done for u in "SL0123abcdefghMNOWXF")
    want("full")
    e(f"s_mov_b32 s{sC}, 4")
    e(f"s_mov_b32 s{sSlot}, {(4 % NS) * SLOT}")
    g.label("L_P_loop")
    e(f"s_add_u32 s{sT0}, s{sA}, s{sC}")
    e(f"s_cmp_lt_u32 s{sC}, 9")
    e(f"s_cselect_b32 s{sT1}, 7, 0")
    e(f"s_cselect_b32 s{sT2}, 0, 1")
    e(f"s_add_u32 s{sT0}, s{sT0}, s{sT1}")
    e(f"s_and_b32 s{sT0}, s{sT0}, 7")
    e(f"s_lshl_b32 s{sT0}, s{sT0}, 1")
    e(f"s_add_u32 s{sSt}, s{sT0}, s{sT2}")
    e(f"s_lshl_b32 s{sAk}, s{sSt}, 7")
    calc_pos2()
    e(f"s_cmp_eq_u64 s[{sRdy}:{sRdy+1}], -1")
    e("s_cbranch_scc1 L_P_nopoll")
    poll_issue()
    g.label("L_P_nopoll")
    for u in range(8):
        if u == 0:
            e(f"s_add_u32 m0, s{sSlot}, s{sAm0}"); e("s_nop 0")
        if u == 4:
            e("s_add_u32 m0, m0, 4096"); e("s_nop 0")
        off = f" offset:{1024*(u&3)}" if (u & 3) else ""
        e(f"buffer_load_dwordx4 v{vAo+u}, s[{SX}:{SX+3}], s{sAk} offen{off} lds")
    e(f"s_cmp_eq_u64 s[{sRdy}:{sRdy+1}], -1")
    e("s_cbranch_scc1 L_P_noeval")
    e("s_waitcnt vmcnt(8)")
    poll_eval()
    g.label("L_P_noeval")
    wdma(None, 0)
    stamp((f"s{sC}", 47), lvl=2)
    e("s_waitcnt vmcnt(12)")
    e("s_barrier                               ; B_(c-2)")
    e(f"s_add_u32 s{sSlot}, s{sSlot}, {SLOT}")
    e(f"s_cmp_eq_u32 s{sSlot}, {NS*SLOT}")
    e(f"s_cselect_b32 s{sSlot}, 0, s{sSlot}")
    e(f"s_add_u32 s{sC}, s{sC}, 1")
    e(f"s_cmp_lt_u32 s{sC}, 16")
    e("s_cbranch_scc1 L_P_loop")
    e("s_waitcnt vmcnt(0)")
    e("s_barrier                               ; B_14")
    e(f"s_cmp_lg_u32 s{sJ}, 0")
    e("s_cbranch_scc1 L_P_b15")
    srd(SD, 14, 256)
    e("s_mov_b64 exec, 1")
    e("v_mov_b32 v26, 1")
    e(f"buffer_atomic_add v26, v{vFl}, s[{SD}:{SD+3}], 0 offen sc0")
    e("s_barrier                               ; B_15")
    e("s_waitcnt vmcnt(0)")
    e("v_readfirstlane_b32 s40, v26")
    e("s_cmp_lg_u32 s40, 255")
    e("s_cbranch_scc1 L_P_fin")
    e(f"v_mov_b32 v5, {T_OFF}")
    e(f"buffer_store_dwordx2 {vr(vTag,2)}, v5, s[{SWs}:{SWs+3}], 0 offen sc1")
    e("s_branch L_P_fin")
    g.label("L_P_b15")
    e("s_barrier                               ; B_15")
    g.label("L_P_fin")
    stamp_out()
    g.label("L_end")
    e("s_endpgm")
    g.label("L_slow")
    e(f"s_mov_b32 s{sCnt}, 0")
    g.label("L_slow_poll")
    poll_issue()
    e("s_waitcnt vmcnt(0)")
    poll_eval()
    e(f"s_add_u32 s{sCnt}, s{sCnt}, 1")
    e(f"s_bitcmp1_b64 s[{sRdy}:{sRdy+1}], s{sBit}")
    e("s_cbranch_scc1 L_slow_ret")
    e(f"s_cmp_lt_u32 s{sCnt}, s{sNp}")
    e("s_cbranch_scc1 L_slow_poll")
    e(f"s_mov_b32 s{sNp}, 0")
    calc_prod()
    calc_dst()
    vmf = VM(e)
    m56()
    for n in range(8): qload(vmf, n)
    for i in range(4): unit(vmf, i, glob=False)
    full()
    e("s_waitcnt vmcnt(0) lgkmcnt(0)")
    e("s_cmp_eq_u32 0, 1")
    g.label("L_slow_ret")
    e(f"s_setpc_b64 s[{sRet}:{sRet+1}]")

    out = HEADER
    out += f"; @launch grid=(256,1,1) block=(512,1,1) lds={LDS_TOTAL}\n"
    out += '.amdgcn_target "amdgcn-amd-amdhsa--gfx950"\n.text\n'
    out += f".globl {NAME}_kernel\n.p2align 8\n.type {NAME}_kernel,@function\n{NAME}_kernel:\n" + "\n".join(g.lines) + "\n"
    out += f""".section .rodata,"a"
.p2align 6
.amdhsa_kernel {NAME}_kernel
  .amdhsa_next_free_vgpr 256
  .amdhsa_next_free_sgpr 100
  .amdhsa_accum_offset 256
  .amdhsa_group_segment_fixed_size 0
  .amdhsa_kernarg_size 56
  .amdhsa_user_sgpr_count 2
  .amdhsa_user_sgpr_kernarg_segment_ptr 1
  .amdhsa_system_sgpr_workgroup_id_x 1
  .amdhsa_float_denorm_mode_32 3
.end_amdhsa_kernel
"""
    return out

if __name__ == "__main__":
    path = sys.argv[1] if len(sys.argv) > 1 else f"cdna_kernels/{NAME}.s"
    opts = {}
    for a in sys.argv[2:]:
        k, v = a.split("=")
        opts[k] = int(v) if v.lstrip("-").isdigit() and k != "ps" else v
    open(path, "w").write(build(opts))
    print("wrote", path)
```

```python
import sys

NAME = "standalone__normalfloat_lut_codebook_lookup__prompt"
HEADER = """; Kernarg layout for this problem (56 bytes, ptrs only, base s[0:1]):
"""
A_SLOT = 32768
B_SLOT = 14336
SLOT = A_SLOT + B_SLOT
NS = 3
LUT_OFF = NS * SLOT
LDS_TOTAL = LUT_OFF + 512
STG_STRIDE = 240
W_OFF = 1 << 24
W_BYTES = 32 * 16 * B_SLOT
FL_OFF = W_BYTES
T_OFF = FL_OFF + 32 * 512
WS_BYTES = T_OFF + 128

class Gen:
    def __init__(self): self.lines = []
    def e(self, s): self.lines.append("    " + s)
    def label(self, s): self.lines.append(s + ":")

def vr(b, n=1): return f"v{b}" if n == 1 else f"v[{b}:{b+n-1}]"
def aux(opts, k, default=""):
    v = opts.get(k, default)
    return (" " + v.replace("_", " ")) if v and v != "none" else ""

class VM:
    def __init__(self, e): self.e = e; self.ops = []; self.upto = -1
    def issue(self, name, text): self.e(text); self.ops.append(name)
    def wait(self, names, extra=""):
        last = max(i for i, n in enumerate(self.ops) if n in names)
        assert all(n in self.ops for n in names), names
        if last <= self.upto:
            if extra: self.e("s_waitcnt" + extra)
            return
        self.upto = last
        y = len(self.ops) - 1 - last
        assert y <= 63
        self.e(f"s_waitcnt vmcnt({y}){extra}")

def build(opts):
    g = Gen(); e = g.e
    ST = opts.get("stamps", 0)
    NPOLL = opts.get("npoll", 64)
    FB = opts.get("forcefb", 0)
    WST = aux(opts, "wst")
    SX, SWs, SO, SQ, SC, SS, SD = 16, 20, 24, 28, 64, 68, 84
    sM0, sA, sW, sNT = 36, 37, 38, 39
    sT0, sT1, sT2, sT3 = 40, 41, 42, 43
    sI, sSlot, sAk, sWk, sAm0, sBm0 = 44, 45, 46, 47, 48, 49
    sM56, sRdy, sMaskS = 50, 52, 54
    sC, sMode, sJ, sWbase = 56, 57, 58, 59
    sQoff, sLut, sSt, sFl, sCnt, sBit, sNp, sXcc = 72, 73, 74, 75, 76, 77, 78, 79
    sPub, sImg = 88, 89
    sOdd, sDef = 33, 32
    vSt = 251
    def stamp(idx, real=False, lvl=1):
        if not ST or (lvl == 2 and ST != 1): return
        e(("s_memrealtime" if real else "s_memtime") + " s[60:61]")
        e("s_waitcnt lgkmcnt(0)")
        if isinstance(idx, int):
            e(f"v_writelane_b32 v{vSt}, s60, {idx}")
        else:
            e(f"s_add_u32 m0, {idx[0]}, {idx[1]}"); e("s_nop 0")
            e(f"v_writelane_b32 v{vSt}, s60, m0")
    def stamp_out():
        if not ST: return
        stamp(9); e("s_waitcnt vmcnt(0)"); stamp(10); stamp(1, True)
        e("s_mov_b64 exec, -1")
        e("s_mov_b32 s80, s34"); e("s_and_b32 s81, s35, 0xffff"); e("s_mov_b32 s82, 0x100000"); e("s_mov_b32 s83, 0x20000")
        e("s_lshl_b32 s62, s2, 3"); e(f"s_add_u32 s62, s62, s{sW}"); e("s_lshl_b32 s62, s62, 8")
        e("v_lshlrev_b32 v1, 2, v0")
        e(f"buffer_store_dword v{vSt}, v1, s[80:83], s62 offen")
    def srd(b, lo, nbytes, add=0):
        if add:
            e(f"s_add_u32 s{b}, s{lo}, {add}"); e(f"s_addc_u32 s{b+1}, s{lo+1}, 0"); e(f"s_and_b32 s{b+1}, s{b+1}, 0xffff")
        else:
            e(f"s_mov_b32 s{b}, s{lo}"); e(f"s_and_b32 s{b+1}, s{lo+1}, 0xffff")
        e(f"s_mov_b32 s{b+2}, {nbytes}"); e(f"s_mov_b32 s{b+3}, 0x20000")

    vQ, vL16, vTag, vScl, vFl, vDst, vJunk = 240, 241, 242, 244, 248, 249, 250
    R, O = 128, 160
    vAo, vPoll = 16, 24
    full = lambda: e("s_mov_b64 exec, -1")
    m56 = lambda: e(f"s_mov_b64 exec, s[{sM56}:{sM56+1}]")

    e("s_cmp_ge_u32 s2, 256")
    e("s_cbranch_scc1 L_end")
    e("s_load_dwordx8 s[4:11], s[0:1], 0")
    e("s_load_dwordx4 s[12:15], s[0:1], 32")
    e("s_load_dwordx2 s[34:35], s[0:1], 48")
    if ST: e(f"v_mov_b32 v{vSt}, 0")
    stamp(0, True); stamp(2)
    e("v_lshrrev_b32 v1, 6, v0")
    e("v_and_b32 v0, 63, v0")
    e(f"v_readfirstlane_b32 s{sW}, v1")
    e(f"s_and_b32 s{sT0}, s2, 7")
    e(f"s_lshr_b32 s{sT1}, s2, 3")
    e(f"s_and_b32 s{sM0}, s{sT1}, 7")
    e(f"s_add_u32 s{sA}, s{sM0}, s{sT0}")
    e(f"s_and_b32 s{sA}, s{sA}, 7")
    e(f"s_lshr_b32 s{sT1}, s{sT1}, 3")
    e(f"s_lshl_b32 s{sT0}, s{sT0}, 2")
    e(f"s_add_u32 s{sNT}, s{sT0}, s{sT1}")
    e(f"s_lshl_b32 s{sM0}, s{sM0}, 8")
    e(f"s_and_b32 s{sJ}, s{sW}, 3")
    e(f"s_lshr_b32 s{sMode}, s{sW}, 2")
    MIX = opts.get("mix", 1)
    e(f"v_lshlrev_b32 v{vL16}, 4, v0")
    e("v_cmp_le_u32 vcc, 28, v0")
    e(f"v_mov_b32 v2, {2*14336}")
    e("v_subrev_u32 v3, 28, v0")
    e("v_cndmask_b32 v2, 0, v2, vcc")
    e("v_cndmask_b32 v3, v0, v3, vcc")
    if MIX:
        e(f"s_and_b32 s{sOdd}, s{sNT}, 1")
        e(f"s_lshl_b32 s{sT0}, s{sOdd}, 2")
        e(f"v_add_u32 v3, s{sT0}, v3")
        e("v_subrev_u32 v5, 28, v3")
        e("v_min_u32 v3, v3, v5")
    e(f"v_lshl_add_u32 v{vQ}, v3, 4, v2")
    e(f"v_lshlrev_b32 v{vFl}, 3, v0")
    e("v_lshlrev_b32 v3, 3, v3")
    e("v_lshlrev_b32 v4, 1, v0")
    e(f"v_mov_b32 v5, {T_OFF}")
    e(f"s_mov_b32 s{sM56}, -1")
    e(f"s_mov_b32 s{sM56+1}, 0x00ffffff")
    e(f"s_lshl_b32 s{sSt}, s{sA}, 1")
    e(f"s_add_u32 s{sSt}, s{sSt}, s{sMode}")
    e(f"s_mul_i32 s{sSlot}, s{sMode}, {SLOT}")
    e(f"s_mul_i32 s{sWbase}, s{sNT}, {16*B_SLOT}")
    e(f"s_mul_i32 s{sBm0}, s{sJ}, 3584")
    e(f"s_mul_i32 s{sT3}, s{sNT}, 224")
    def calc_prod():
        e(f"s_lshl_b32 s{sQoff}, s{sSt}, 2")
        e(f"s_add_u32 s{sQoff}, s{sQoff}, s{sJ}")
        e(f"s_mul_i32 s{sQoff}, s{sQoff}, {16*14336}")
        e(f"s_mul_i32 s{sT0}, s{sNT}, 448")
        e(f"s_add_u32 s{sQoff}, s{sQoff}, s{sT0}")
    calc_prod()
    e("s_waitcnt lgkmcnt(0)")
    srd(SQ, 6, 1024 * 3584 * 4)
    srd(SC, 8, 32)
    srd(SS, 10, 3584 * 2)
    srd(SWs, 34, WS_BYTES, W_OFF)
    srd(SX, 4, 2048 * 1024 * 2)
    def small(vm):
        vm.issue("cb", f"buffer_load_ushort v6, v4, s[{SC}:{SC+3}], 0 offen")
        vm.issue("am", f"buffer_load_dwordx2 v[14:15], v3, s[{SS}:{SS+3}], s{sT3} offen")
        vm.issue("T", f"buffer_load_dwordx2 {vr(vTag,2)}, v5, s[{SWs}:{SWs+3}], 0 offen sc1")
    def qload(vm, n, R=R, sq=None):
        sq = sQoff if sq is None else sq
        i, rr = n >> 1, n & 1
        row = 8 * (i & 1) + 4 * (i >> 1) + rr
        e(f"s_add_u32 s{sT0}, s{sq}, {row*14336}")
        vm.issue(f"q{n}", f"buffer_load_dwordx4 {vr(R+4*n,4)}, v{vQ}, s[{SQ}:{SQ+3}], s{sT0} offen{aux(opts,'qld','nt')}")
    def calc_dst():
        e(f"s_add_u32 s{sT1}, s{sSlot}, s{sBm0}")
        e(f"s_add_u32 s{sT1}, s{sT1}, {A_SLOT}")
        e(f"v_add_u32 v{vDst}, s{sT1}, v{vL16}")
    def consts():
        e(f"s_lshl_b32 s{sLut}, s{sW}, 6")
        e(f"s_add_u32 s{sLut}, s{sLut}, {LUT_OFF}")
        e(f"s_lshl_b32 s{sFl}, s{sNT}, 9")
        e(f"s_add_u32 s{sFl}, s{sFl}, {FL_OFF}")
        e(f"s_mul_i32 s{sImg}, s{sSt}, {B_SLOT}")
        e(f"s_add_u32 s{sImg}, s{sImg}, s{sWbase}")
        e(f"s_add_u32 s{sImg}, s{sImg}, s{sBm0}")
        e(f"s_lshl_b32 s{sPub}, s{sSt}, 2")
        e(f"s_add_u32 s{sPub}, s{sPub}, s{sJ}")
        e(f"s_lshl_b32 s{sPub}, s{sPub}, 3")
        e(f"s_add_u32 s{sPub}, s{sPub}, s{sFl}")
        e(f"s_getreg_b32 s{sXcc}, hwreg(HW_REG_XCC_ID, 0, 4)")
        calc_dst()
    def lut_init(vm):
        vm.wait(["cb", "am", "T"])
        e("v_lshlrev_b32 v6, 16, v6")
        e(f"v_lshl_add_u32 v7, v0, 2, s{sLut}")
        e("s_mov_b64 exec, 0xffff")
        e("ds_write_b32 v7, v6")
        full()
        e(f"v_lshlrev_b32 v{vScl}, 16, v14")
        e(f"v_and_b32 v{vScl+1}, 0xffff0000, v14")
        e(f"v_lshlrev_b32 v{vScl+2}, 16, v15")
        e(f"v_and_b32 v{vScl+3}, 0xffff0000, v15")
        e(f"s_mov_b32 s{sT0}, 1664525")
        e(f"s_mov_b32 s{sT1}, 22695477")
        e(f"v_mul_lo_u32 v{vTag}, v{vTag}, s{sT0}")
        e(f"v_mul_lo_u32 v{vTag+1}, v{vTag+1}, s{sT1}")
        e(f"v_add_u32 v{vTag}, 1013904223, v{vTag}")
        e(f"v_add_u32 v{vTag+1}, 0x3c6ef35f, v{vTag+1}")
        e(f"v_and_b32 v{vTag}, -16, v{vTag}")
        e(f"v_or_b32 v{vTag}, s{sXcc}, v{vTag}")
    def unit_parts(i, R=R, O=O):
        p0, p1 = [], []
        for n in range(8):
            v = R + 8 * i + n
            p0.append(f"v_lshl_add_u32 v{v}, v{v}, 2, s{sLut}")
            p0.append(f"ds_read_b32 v{v}, v{v}")
        for rr in range(2):
            p1.append(f"s_waitcnt lgkmcnt({4 - 4*rr})")
            b = R + 8 * i + 4 * rr
            p1.append(f"v_pk_mul_f32 {vr(b,2)}, {vr(b,2)}, {vr(vScl,2)}")
            p1.append(f"v_pk_mul_f32 {vr(b+2,2)}, {vr(b+2,2)}, {vr(vScl+2,2)}")
            p1.append(f"v_cvt_pk_bf16_f32 v{O+4*i+2*rr}, v{b}, v{b+1}")
            p1.append(f"v_cvt_pk_bf16_f32 v{O+4*i+2*rr+1}, v{b+2}, v{b+3}")
        return p0 + p1
    def unit(vm, i, glob=True, WST=WST):
        vm.wait([f"q{2*i}", f"q{2*i+1}"])
        for t in unit_parts(i): e(t)
        if glob:
            vm.issue(f"st{i}", f"buffer_store_dwordx4 {vr(O+4*i,4)}, v{vL16}, s[{SWs}:{SWs+3}], s{sImg} offen offset:{896*i}{WST}")
        e(f"ds_write_b128 v{vDst}, {vr(O+4*i,4)} offset:{896*i}")
    def publish(vm=None):
        e("s_mov_b64 exec, 1")
        t = f"buffer_store_dwordx2 {vr(vTag,2)}, v{vFl}, s[{SWs}:{SWs+3}], s{sPub} offen{WST}"
        if vm: vm.issue("flag", t)
        else: e(t)
        full()
    vm = VM(e)
    small(vm); stamp(11); m56()
    for n in range(8): qload(vm, n)
    full()
    common_ops = list(vm.ops)
    e(f"s_cmp_eq_u32 s{sMode}, 1")
    e("s_cbranch_scc1 L_P")

    consts()
    ACC = 16
    XB = [128, 160]
    WR = 192
    vA0b, vA1b, vBb, vA0, vA1, vBn, vBc, vSE, vSLw, vSLr, vOut = 1, 2, 7, 8, 9, 10, 11, 12, 13, 252, 253
    ES, LS = 144, 112
    def acc(mi, t): return ACC + (mi * 7 + t) * 4
    def fx(p, mi, h): return XB[p] + (mi * 2 + h) * 4
    def fw(n, h): return WR + (n % 7) * 8 + h * 4
    for r in range(112):
        e(f"v_mov_b32 v{ACC+r}, 0")
    lut_init(vm)
    srd(SO, 12, 2048 * 3584 * 2)
    e("v_lshrrev_b32 v3, 4, v0")
    e("v_and_b32 v4, 15, v0")
    e("v_lshrrev_b32 v5, 1, v4")
    e("v_xor_b32 v5, v5, v3")
    e("v_lshlrev_b32 v5, 4, v5")
    e("v_lshl_add_u32 v5, v4, 7, v5")
    e(f"s_lshl_b32 s{sT2}, s{sW}, 13")
    e(f"v_add_u32 v{vA0b}, s{sT2}, v5")
    e(f"v_xor_b32 v{vA1b}, 64, v{vA0b}")
    e(f"v_mov_b32 v{vA0}, v{vA0b}")
    e(f"v_mov_b32 v{vA1}, v{vA1b}")
    e("v_bfe_u32 v5, v0, 3, 2")
    e("v_lshrrev_b32 v6, 5, v0")
    e("v_lshl_add_u32 v5, v6, 3, v5")
    e("v_mul_u32_u24 v5, 448, v5")
    e("v_and_b32 v6, 3, v0")
    e("v_lshl_add_u32 v5, v6, 4, v5")
    e("v_bfe_u32 v6, v0, 2, 1")
    e("v_lshl_add_u32 v5, v6, 3, v5")
    e(f"v_add_u32 v{vBb}, {A_SLOT}, v5")
    e(f"v_mov_b32 v{vBn}, v{vBb}")
    e(f"v_mov_b32 v{vBc}, v{vBb}")
    e(f"s_mul_i32 s{sT0}, s{sW}, {32*STG_STRIDE}")
    e(f"s_add_u32 s{sT0}, s{sT0}, {SLOT}")
    e(f"v_mul_u32_u24 v5, {STG_STRIDE}, v4")
    e("v_lshl_add_u32 v5, v3, 3, v5")
    e(f"v_add_u32 v{vSE}, s{sT0}, v5")
    e(f"s_add_u32 s{sT0}, s{sT2}, {2*SLOT}")
    e(f"v_add_u32 v{vSLw}, s{sT0}, v5")
    def out_addr(sStg, rowadd, vR, vO, vPR, vPO):
        e(f"v_mul_u32_u24 v5, {STG_STRIDE}, v3")
        e("v_lshl_add_u32 v5, v4, 4, v5")
        e(f"v_add_u32 v{vR}, s{sStg}, v5")
        e(f"s_lshl_b32 s{sT2}, s{sJ}, 6")
        e(f"s_add_u32 s{sT2}, s{sT2}, s{sM0}")
        if rowadd: e(f"s_add_u32 s{sT2}, s{sT2}, {rowadd}")
        e(f"s_mul_i32 s{sT2}, s{sT2}, 7168")
        e(f"s_add_u32 s{sT2}, s{sT2}, s{sT3}")
        e(f"s_lshl_b32 s{sT1}, s{sOdd}, 5")
        e(f"s_add_u32 s{sT1}, s{sT1}, s{sT2}")
        e(f"v_mul_u32_u24 v5, 7168, v3")
        e("v_lshl_add_u32 v5, v4, 4, v5")
        e(f"v_add_u32 v{vO}, s{sT1}, v5")
        e(f"s_cmp_eq_u32 s{sOdd}, 1")
        e(f"s_cselect_b32 s{sT1}, 0, 192")
        e(f"s_add_u32 s{sT2}, s{sT2}, s{sT1}")
        e("v_lshrrev_b32 v3, 1, v0")
        e("v_and_b32 v4, 1, v0")
        e("v_mul_u32_u24 v5, 7168, v3")
        e("v_lshl_add_u32 v5, v4, 4, v5")
        e(f"v_add_u32 v{vPO}, s{sT2}, v5")
        e(f"v_mul_u32_u24 v5, {STG_STRIDE}, v3")
        e("v_lshl_add_u32 v5, v4, 4, v5")
        e(f"v_add_u32 v{vPR}, s{sStg}, v5")
        e(f"s_mov_b32 s{sMaskS}, 0x0fff0fff")
        e(f"s_mov_b32 s{sMaskS+1}, 0x0fff0fff")
    def out_store(D, vR, vO, vPR, vPO, st7=False):
        e(f"ds_read_b128 {vr(D+32,4)}, v{vPR} offset:192")
        e(f"s_mov_b64 exec, s[{sMaskS}:{sMaskS+1}]")
        for z in range(8):
            e(f"ds_read_b128 {vr(D+4*z,4)}, v{vR} offset:{4*z*STG_STRIDE}")
        full()
        e("s_waitcnt lgkmcnt(8)")
        e(f"buffer_store_dwordx4 {vr(D+32,4)}, v{vPO}, s[{SO}:{SO+3}], 0 offen")
        e(f"s_mov_b64 exec, s[{sMaskS}:{sMaskS+1}]")
        for z in range(8):
            e(f"s_mov_b32 s{sT0}, {4*z*7168}")
            e(f"s_waitcnt lgkmcnt({7-z})")
            e(f"buffer_store_dwordx4 {vr(D+4*z,4)}, v{vO}, s[{SO}:{SO+3}], s{sT0} offen{aux(opts,'auxs','nt')}")
            if z == 0 and st7: stamp(7)
    out_addr(sT0, 32, vSLr, vOut, 254, 255)
    m56()
    for i in range(4):
        unit(vm, i, WST=aux(opts, "wsta"))
        if i == 0: stamp(12)
    full()
    stamp(3)
    vm.wait(["st3"])
    publish()
    stamp(13)
    e(f"s_mov_b32 s{sI}, 0")
    e("s_waitcnt lgkmcnt(0)")
    stamp(4)
    e("s_barrier                               ; B_-1")
    stamp(5); stamp(14, True)

    class LG:
        def __init__(self): self.q = []
        def issue(self, name, text): e(text); self.q.append(name)
        def wait(self, names):
            idx = [i for i, n in enumerate(self.q) if n in names]
            if not idx: return
            y = len(self.q) - 1 - max(idx)
            e(f"s_waitcnt lgkmcnt({min(y, 15)})"); self.q = self.q[max(idx) + 1:]
    def wreads(n, t, va):
        return [(f"w{n%7}", f"ds_read_b64_tr_b16 {vr(fw(n,h)+2*u,2)}, v{va} offset:{64*t + h*16*448 + u*4*448}") for h in range(2) for u in range(2)]
    def xreads(p):
        return [(f"x{p}", f"ds_read_b128 {vr(fx(p,mi,h),4)}, v{vA0 if h == 0 else vA1} offset:{2048*mi}") for mi in range(4) for h in range(2)]
    def col(lg, n, t, p, side, needx=False, sub=None):
        lg.wait([f"w{n%7}"] + ([f"x{p}"] if needx else []))
        side = list(side)
        mis = list(range(4) if t % 2 == 0 else range(3, -1, -1))
        if sub is not None: mis = [m_ for m_ in mis if m_ in sub]
        k = 8 - 2 * len(mis)
        for j, mi in enumerate(mis):
            for hh in range(2):
                h = hh if j % 2 == 0 else 1 - hh
                e(f"v_mfma_f32_16x16x32_bf16 {vr(acc(mi,t),4)}, {vr(fw(n,h),4)}, {vr(fx(p,mi,h),4)}, {vr(acc(mi,t),4)}")
                left = 8 - k; k += 1
                for _ in range(-(-len(side) // left)):
                    nm, tx = side.pop(0)
                    if nm == "WAIT": lg.wait([tx])
                    elif nm: lg.issue(nm, tx)
                    else: e(tx)
        assert not side
    lg = LG()
    def nxt_reads(p):
        return wreads(0, 0, vBn) + xreads(p) + wreads(1, 1, vBn) + wreads(2, 2, vBn) + wreads(3, 3, vBn)
    nxt = nxt_reads(0)
    for nm, tx in nxt[:12]: lg.issue(nm, tx)
    e("s_waitcnt lgkmcnt(0)"); lg.q = []
    for nm, tx in nxt[12:]: lg.issue(nm, tx)
    entry_q = list(lg.q)
    adv = [(None, f"s_add_u32 s{sSlot}, s{sSlot}, {SLOT}"),
           (None, f"s_cmp_eq_u32 s{sSlot}, {NS*SLOT}"),
           (None, f"s_cselect_b32 s{sSlot}, 0, s{sSlot}"),
           (None, f"v_add_u32 v{vA0}, s{sSlot}, v{vA0b}"),
           (None, f"v_add_u32 v{vA1}, s{sSlot}, v{vA1b}"),
           (None, f"v_add_u32 v{vBn}, s{sSlot}, v{vBb}")]
    if opts.get("align", 0): g.lines.append(f".p2align {opts['align']}")
    g.label("L_cons_loop")
    for p in range(2):
        for t in range(3):
            col(lg, t, t, p, wreads(t + 4, t + 4, vBn), needx=(t == 0))
        tail = [(None, f"s_add_u32 s{sI}, s{sI}, 1")]
        col(lg, 3, 3, p, adv + tail)
        if lg.q: e("s_waitcnt lgkmcnt(0)"); lg.q = []
        stamp((f"s{sI}", 15), lvl=2)
        e("s_barrier                               ; B_s")
        stamp((f"s{sI}", 31), lvl=2)
        if p == 1: e(f"s_cmp_lt_u32 s{sI}, 14")
        nxt = nxt_reads(1 - p)
        for t in range(4, 7):
            col(lg, t, t, p, nxt[8 * (t - 4): 8 * (t - 3)])
        if p == 1:
            lg.wait(["w0", "x0"]); assert lg.q == entry_q, (lg.q, entry_q)
    e("s_cbranch_scc1 L_cons_loop")
    e(f"v_mov_b32 v{vBc}, v{vBn}")
    NF = opts.get("nf", 2)
    H0, H1 = (0, 1), (2, 3)
    uses = [(0, t, None) for t in range(NF)] + [(0, t, H0) for t in range(NF, 7)] + [(1, t, H0) for t in range(7)] \
         + [(1, t, H1) for t in list(range(NF, 7)) + list(range(NF))] + [(0, t, H1) for t in range(NF, 7)]
    def cvt(t, sub):
        r = []
        for mi in [m_ for m_ in (range(4) if t % 2 == 0 else range(3, -1, -1)) if m_ in sub]:
            a = acc(mi, t)
            r.append((None, f"v_cvt_pk_bf16_f32 v{a}, v{a}, v{a+1}"))
            r.append((None, f"v_cvt_pk_bf16_f32 v{a+1}, v{a+2}, v{a+3}"))
            r.append(("o", f"ds_write_b64 v{vSE if mi < 2 else vSLw}, {vr(a,2)} offset:{(mi & 1)*16*STG_STRIDE + 32*t}"))
        return r
    nU = len(uses)
    BPOS = opts.get("bpos", 3)
    tasks = []
    for t in range(4, 7): tasks.append((0, t, wreads(t, t, vBc)))
    tasks.append((0, BPOS + 1, adv))
    xr = xreads(1)
    tasks.append((BPOS + 1, 7, xr[:4]))
    for t in range(7): tasks.append((max(BPOS, t) + 1, 7 + t, wreads(t, t, vBn)))
    tasks.append((BPOS + 1, 14, xr[4:]))
    for n, (q, t, sub) in enumerate(uses):
        if q == 1 and sub == H1 and t >= NF:
            dl = uses.index((0, t, H1))
            tasks.append((n + 1, dl, wreads(t, t, vBc)))
    EPOS = opts.get("epos", 18)
    last = {}
    for n, (q, t, sub) in enumerate(uses):
        for hf in (H0, H1):
            if sub is None or sub == hf: last[(t, hf)] = n
    for (t, hf), n in last.items():
        tasks.append((n + 2, EPOS if hf == H0 else nU + 5, cvt(t, hf)))
    tasks.append((EPOS, EPOS + 1, [(None, "s_nop 0"), (None, "s_nop 0"), (None, "s_nop 0"), ("WAIT", "o"), (None, "s_barrier")]))
    tasks = [[a_, d_, list(it)] for a_, d_, it in tasks]
    CAP = opts.get("cap", 4)
    for n, (q, t, sub) in enumerate(uses):
        nm = 8 if sub is None else 4
        cap = CAP * nm // 4
        side = []
        for tk in sorted([k_ for k_ in tasks if k_[0] <= n and k_[2]], key=lambda k_: k_[1]):
            must = tk[1] <= n + (2 if tk[2][0][0] and tk[2][0][0][0] in "wx" else 1)
            while tk[2] and (len(side) < cap or must):
                side.append(tk[2].pop(0))
        col(lg, t, t, q, side, needx=(n in (7, 14)), sub=sub)
        if n == BPOS:
            e("s_barrier                               ; B_14")
        if n == EPOS: stamp(8)
    stamp(6); stamp(15, True)
    e("s_nop 7")
    for tk in sorted(tasks, key=lambda k_: k_[0]):
        for nm_, tx in tk[2]:
            assert nm_ in (None, "o"), (nm_, tx)
            e(tx)
    out_store(XB[0], vSLr, vOut, 254, 255, True)
    stamp_out()
    e("s_endpgm")

    g.label("L_P")
    vm = VM(e); vm.ops = list(common_ops)
    sRet = 92
    sKp = [90, 91, 94, 95]
    WLD = aux(opts, "wld", "sc1")
    def p_setup():
        e("v_lshrrev_b32 v8, 3, v0")
        e("v_lshrrev_b32 v9, 4, v0")
        e("v_and_b32 v10, 7, v0")
        e("v_xor_b32 v10, v10, v9")
        e("v_xor_b32 v11, 4, v10")
        e(f"s_lshl_b32 s{sT0}, s{sJ}, 6")
        e(f"s_add_u32 s{sT0}, s{sT0}, s{sM0}")
        e(f"s_lshl_b32 s{sT0}, s{sT0}, 11")
        e(f"v_lshl_add_u32 v8, v8, 11, s{sT0}")
        e("v_lshl_add_u32 v10, v10, 4, v8")
        e("v_lshl_add_u32 v11, v11, 4, v8")
        for u in range(8):
            e(f"v_add_u32 v{vAo+u}, {16384*u - 1024*(u&3)}, v{10 + (u&1)}")
        e(f"s_lshl_b32 s{sAm0}, s{sJ}, 13")
        e(f"s_lshl_b32 s{sKp[0]}, s{sA}, 8")
        e(f"s_add_u32 s{sKp[1]}, s{sKp[0]}, 128")
        e(f"s_add_u32 s{sKp[2]}, s{sKp[0]}, 256")
        e(f"s_and_b32 s{sKp[2]}, s{sKp[2]}, 2047")
        e(f"s_add_u32 s{sKp[3]}, s{sKp[0]}, 512")
        e(f"s_and_b32 s{sKp[3]}, s{sKp[3]}, 2047")
        e(f"s_mov_b32 s{sNp}, {NPOLL}")
        e(f"s_mov_b64 s[{sRdy}:{sRdy+1}], 0")
        consts()
    def calc_pos2():
        e(f"s_lshl_b32 s{sBit}, s{sSt}, 2")
        e(f"s_add_u32 s{sBit}, s{sBit}, s{sJ}")
        e(f"s_mul_i32 s{sWk}, s{sSt}, {B_SLOT}")
        e(f"s_add_u32 s{sWk}, s{sWk}, s{sWbase}")
        e(f"s_add_u32 s{sWk}, s{sWk}, s{sBm0}")
    def xq(pos, quad):
        e(f"s_add_u32 m0, s{sAm0}, {(pos % NS)*SLOT + 4096*quad}")
        e("s_nop 0")
        for u in range(4 * quad, 4 * quad + 4):
            off = f" offset:{1024*(u&3)}" if (u & 3) else ""
            vm.issue(f"x{pos}_{u}", f"buffer_load_dwordx4 v{vAo+u}, s[{SX}:{SX+3}], s{sKp[pos]} offen{off} lds")
    nchk = [0]
    def wdma(vm, c, mode="must"):
        n = nchk[0]; nchk[0] += 1
        if mode == "late":
            e(f"s_cmp_eq_u32 s{sDef}, 0")
            e(f"s_cbranch_scc1 L_wdone{n}")
        else:
            e(f"s_bitcmp1_b64 s[{sRdy}:{sRdy+1}], s{sBit}")
        if mode == "try":
            e(f"s_cselect_b32 s{sDef}, 0, 1")
            e(f"s_cbranch_scc0 L_wdone{n}")
        else:
            if mode == "must": e(f"s_cbranch_scc1 L_wok{n}")
            e(f"s_mov_b32 s{sCnt}, 0")
            g.label(f"L_wpoll{n}")
            poll_issue()
            e("s_waitcnt vmcnt(0)")
            poll_eval()
            e(f"s_add_u32 s{sCnt}, s{sCnt}, 1")
            e(f"s_bitcmp1_b64 s[{sRdy}:{sRdy+1}], s{sBit}")
            e(f"s_cbranch_scc1 L_wok{n}")
            e(f"s_cmp_lt_u32 s{sCnt}, s{sNp}")
            e(f"s_cbranch_scc1 L_wpoll{n}")
            e(f"s_call_b64 s[{sRet}:{sRet+1}], L_slow")
            e(f"s_branch L_wdone{n}")
            g.label(f"L_wok{n}")
        e(f"s_add_u32 s{sT1}, s{sSlot}, s{sBm0}")
        e(f"s_add_u32 m0, s{sT1}, {A_SLOT}")
        e("s_nop 0")
        for z in range(4):
            if z == 3: e("s_mov_b32 exec_hi, 0")
            off = f" offset:{1024*z}" if z else ""
            t = f"buffer_load_dwordx4 v{vL16}, s[{SWs}:{SWs+3}], s{sWk} offen{off}{WLD} lds"
            if vm and mode != "try": vm.issue(f"w{c}_{z}", t)
            else: e(t)
        e("s_mov_b32 exec_hi, -1")
        g.label(f"L_wdone{n}")
    def poll_issue(vm=None, name="poll"):
        t = f"buffer_load_dwordx2 {vr(vPoll,2)}, v{vFl}, s[{SWs}:{SWs+3}], s{sFl} offen sc1"
        if vm: vm.issue(name, t)
        else: e(t)
    def poll_eval():
        if not FB: e(f"v_cmp_eq_u64 s[{sRdy}:{sRdy+1}], {vr(vPoll,2)}, {vr(vTag,2)}")
        e("s_nop 3")
    def landed(c): return [f"x{c}_{u}" for u in range(8)] + ([f"w{c}_3"] if c > 1 else [])
    script = opts.get("ps", "SpL0a1b2c3dpMefvTNFwghXO")
    cur = "full"
    npoll_ = [0]
    done = set()
    def want(m):
        nonlocal cur
        if cur != m:
            (full if m == "full" else m56)(); cur = m
    for ch in script:
        if ch == "S": want("full"); p_setup()
        elif ch == "s": want("full"); small(vm); stamp(11)
        elif ch in "Qqr":
            want("m56")
            for n in {"Q": range(8), "q": range(4), "r": range(4, 8)}[ch]: qload(vm, n)
        elif ch == "L": want("full"); lut_init(vm)
        elif ch in "0123":
            want("m56"); unit(vm, int(ch))
            if ch == "0": stamp(12)
            if ch == "3": stamp(3)
        elif ch in "abcdefgh":
            k = "abcdefgh".index(ch)
            if k >= 6: assert "N" in done
            want("full"); xq(k >> 1, k & 1)
        elif ch in "MNO":
            c = "MNO".index(ch)
            if ch == "N": assert all(u in done for u in "0123")
            vm.wait(landed(c), " lgkmcnt(0)" if ch == "N" else "")
            if ch == "M": stamp(4)
            e(f"s_barrier                               ; B_{c-1}"); stamp(32 + c)
        elif ch == "p":
            want("full"); npoll_[0] += 1; poll_issue(vm, f"poll{npoll_[0]}")
        elif ch == "v":
            want("full"); vm.wait([f"poll{npoll_[0]}"]); poll_eval()
        elif ch == "w":
            want("full"); wdma(vm, 2, "late"); stamp(49); done.add("W")
        elif ch in "WXT":
            c = 2 + "WX".index(ch) if ch != "T" else 2
            assert all(u in done for u in "0123")
            if ch == "X": assert "N" in done
            want("full")
            e(f"s_lshr_b32 s{sSt}, s{sKp[c]}, 7")
            calc_pos2()
            e(f"s_mov_b32 s{sSlot}, {(c % NS)*SLOT}")
            wdma(vm, c, "try" if ch == "T" else "must")
            if ch != "T": stamp(47 + c)
        elif ch == "F":
            want("full"); vm.wait([f"st{i}" for i in range(4)]); publish(vm); stamp(13)
        elif ch == "U":
            e(f"s_and_b32 s{sT0}, s{sNT}, 3")
            e(f"s_cmp_eq_u32 s{sT0}, s{sJ}")
            e("s_cbranch_scc1 L_P_u")
            e(f"s_waitcnt vmcnt({opts.get('uw', 6)})")
            g.label("L_P_u")
        done.add(ch)
    assert all(u in done for u in "SL0123abcdefghMNOWXF")
    want("full")
    e(f"s_mov_b32 s{sC}, 4")
    e(f"s_mov_b32 s{sSlot}, {(4 % NS) * SLOT}")
    def calc_loop():
        e(f"s_add_u32 s{sT0}, s{sA}, s{sC}")
        e(f"s_cmp_lt_u32 s{sC}, 9")
        e(f"s_cselect_b32 s{sT1}, 7, 0")
        e(f"s_cselect_b32 s{sT2}, 0, 1")
        e(f"s_add_u32 s{sT0}, s{sT0}, s{sT1}")
        e(f"s_and_b32 s{sT0}, s{sT0}, 7")
        e(f"s_lshl_b32 s{sT0}, s{sT0}, 1")
        e(f"s_add_u32 s{sSt}, s{sT0}, s{sT2}")
        e(f"s_lshl_b32 s{sAk}, s{sSt}, 7")
        calc_pos2()
        e(f"s_add_u32 m0, s{sSlot}, s{sAm0}")
    calc_loop()
    e("s_nop 0")
    g.label("L_P_loop")
    for u in range(8):
        if u == 1:
            e(f"s_cmp_eq_u64 s[{sRdy}:{sRdy+1}], -1")
            e("s_cbranch_scc1 L_P_nopoll")
            poll_issue()
            g.label("L_P_nopoll")
        if u == 4:
            e("s_add_u32 m0, m0, 4096"); e("s_nop 0")
        off = f" offset:{1024*(u&3)}" if (u & 3) else ""
        e(f"buffer_load_dwordx4 v{vAo+u}, s[{SX}:{SX+3}], s{sAk} offen{off} lds")
    e(f"s_cmp_eq_u64 s[{sRdy}:{sRdy+1}], -1")
    e("s_cbranch_scc1 L_P_noeval")
    e("s_waitcnt vmcnt(7)")
    poll_eval()
    g.label("L_P_noeval")
    wdma(None, 0)
    stamp((f"s{sC}", 47), lvl=2)
    e(f"s_add_u32 s{sSlot}, s{sSlot}, {SLOT}")
    e(f"s_cmp_eq_u32 s{sSlot}, {NS*SLOT}")
    e(f"s_cselect_b32 s{sSlot}, 0, s{sSlot}")
    e(f"s_add_u32 s{sC}, s{sC}, 1")
    calc_loop()
    e(f"s_cmp_lt_u32 s{sC}, 16")
    e("s_waitcnt vmcnt(12)")
    e("s_barrier                               ; B_(c-2)")
    e("s_cbranch_scc1 L_P_loop")
    e("s_waitcnt vmcnt(0)")
    e("s_barrier                               ; B_14")
    srd(SO, 12, 2048 * 3584 * 2)
    e("v_lshrrev_b32 v3, 4, v0")
    e("v_and_b32 v4, 15, v0")
    e(f"s_mul_i32 s{sT0}, s{sJ}, {32*STG_STRIDE}")
    e(f"s_add_u32 s{sT0}, s{sT0}, {SLOT}")
    out_addr(sT0, 0, 28, 29, 30, 31)
    e(f"s_cmp_lg_u32 s{sJ}, 0")
    e("s_cbranch_scc1 L_P_e")
    srd(SD, 14, 256)
    e("s_mov_b64 exec, 1")
    e("v_mov_b32 v26, 1")
    e(f"buffer_atomic_add v26, v{vFl}, s[{SD}:{SD+3}], 0 offen sc0")
    full()
    g.label("L_P_e")
    e("s_barrier                               ; E")
    out_store(32, 28, 29, 30, 31)
    e(f"s_cmp_lg_u32 s{sJ}, 0")
    e("s_cbranch_scc1 L_P_fin")
    e("s_waitcnt vmcnt(9)")
    e("v_readfirstlane_b32 s40, v26")
    e("s_cmp_lg_u32 s40, 255")
    e("s_cbranch_scc1 L_P_fin")
    e("s_mov_b64 exec, 1")
    e(f"v_mov_b32 v5, {T_OFF}")
    e(f"buffer_store_dwordx2 {vr(vTag,2)}, v5, s[{SWs}:{SWs+3}], 0 offen sc1")
    g.label("L_P_fin")
    stamp_out()
    g.label("L_end")
    e("s_endpgm")
    g.label("L_slow")
    e(f"s_mov_b32 s{sNp}, 0")
    calc_prod()
    calc_dst()
    vmf = VM(e)
    m56()
    for n in range(8): qload(vmf, n)
    for i in range(4): unit(vmf, i, glob=False)
    full()
    e("s_waitcnt vmcnt(0) lgkmcnt(0)")
    e(f"s_setpc_b64 s[{sRet}:{sRet+1}]")

    out = HEADER
    out += f"; @launch grid=(256,1,1) block=(512,1,1) lds={LDS_TOTAL}\n"
    out += '.amdgcn_target "amdgcn-amd-amdhsa--gfx950"\n.text\n'
    out += f".globl {NAME}_kernel\n.p2align 8\n.type {NAME}_kernel,@function\n{NAME}_kernel:\n" + "\n".join(g.lines) + "\n"
    out += f""".section .rodata,"a"
.p2align 6
.amdhsa_kernel {NAME}_kernel
  .amdhsa_next_free_vgpr 256
  .amdhsa_next_free_sgpr 100
  .amdhsa_accum_offset 256
  .amdhsa_group_segment_fixed_size 0
  .amdhsa_kernarg_size 56
  .amdhsa_user_sgpr_count 2
  .amdhsa_user_sgpr_kernarg_segment_ptr 1
  .amdhsa_system_sgpr_workgroup_id_x 1
  .amdhsa_float_denorm_mode_32 3
.end_amdhsa_kernel
"""
    return out

if __name__ == "__main__":
    path = sys.argv[1] if len(sys.argv) > 1 else f"cdna_kernels/{NAME}.s"
    opts = {}
    for a in sys.argv[2:]:
        k, v = a.split("=")
        opts[k] = int(v) if v.lstrip("-").isdigit() and k != "ps" else v
    open(path, "w").write(build(opts))
    print("wrote", path)
```

```python
import sys

NAME = "standalone__normalfloat_lut_codebook_lookup__prompt"
HEADER = """; Kernarg layout for this problem (56 bytes, ptrs only, base s[0:1]):
"""
A_SLOT = 32768
B_SLOT = 14336
SLOT = A_SLOT + B_SLOT
NS = 3
LUT_OFF = NS * SLOT
LDS_TOTAL = LUT_OFF + 512
STG_STRIDE = 240
W_OFF = 1 << 24
W_BYTES = 32 * 16 * B_SLOT
FL_OFF = W_BYTES
T_OFF = FL_OFF + 32 * 512
WS_BYTES = T_OFF + 128

class Gen:
    def __init__(self): self.lines = []
    def e(self, s): self.lines.append("    " + s)
    def label(self, s): self.lines.append(s + ":")

def vr(b, n=1): return f"v{b}" if n == 1 else f"v[{b}:{b+n-1}]"
def aux(opts, k, default=""):
    v = opts.get(k, default)
    return (" " + v.replace("_", " ")) if v and v != "none" else ""

class VM:
    def __init__(self, e): self.e = e; self.ops = []
    def issue(self, name, text): self.e(text); self.ops.append(name)
    def wait(self, names, extra=""):
        last = max(i for i, n in enumerate(self.ops) if n in names)
        assert all(n in self.ops for n in names), names
        y = len(self.ops) - 1 - last
        assert y <= 63
        self.e(f"s_waitcnt vmcnt({y}){extra}")

def build(opts):
    g = Gen(); e = g.e
    ST = opts.get("stamps", 0)
    NPOLL = opts.get("npoll", 64)
    FB = opts.get("forcefb", 0)
    WST = aux(opts, "wst")
    SX, SWs, SO, SQ, SC, SS, SD = 16, 20, 24, 28, 64, 68, 84
    sM0, sA, sW, sNT = 36, 37, 38, 39
    sT0, sT1, sT2, sT3 = 40, 41, 42, 43
    sI, sSlot, sAk, sWk, sAm0, sBm0 = 44, 45, 46, 47, 48, 49
    sM56, sRdy, sMaskS = 50, 52, 54
    sC, sMode, sJ, sWbase = 56, 57, 58, 59
    sQoff, sLut, sSt, sFl, sCnt, sBit, sNp, sXcc = 72, 73, 74, 75, 76, 77, 78, 79
    sPub, sImg = 88, 89
    vSt = 251
    def stamp(idx, real=False, lvl=1):
        if not ST or (lvl == 2 and ST != 1): return
        e(("s_memrealtime" if real else "s_memtime") + " s[60:61]")
        e("s_waitcnt lgkmcnt(0)")
        if isinstance(idx, int):
            e(f"v_writelane_b32 v{vSt}, s60, {idx}")
        else:
            e(f"s_add_u32 m0, {idx[0]}, {idx[1]}"); e("s_nop 0")
            e(f"v_writelane_b32 v{vSt}, s60, m0")
    def stamp_out():
        if not ST: return
        stamp(9); e("s_waitcnt vmcnt(0)"); stamp(10); stamp(1, True)
        e("s_mov_b64 exec, -1")
        e("s_mov_b32 s80, s34"); e("s_and_b32 s81, s35, 0xffff"); e("s_mov_b32 s82, 0x100000"); e("s_mov_b32 s83, 0x20000")
        e("s_lshl_b32 s62, s2, 3"); e(f"s_add_u32 s62, s62, s{sW}"); e("s_lshl_b32 s62, s62, 8")
        e("v_lshlrev_b32 v1, 2, v0")
        e(f"buffer_store_dword v{vSt}, v1, s[80:83], s62 offen")
    def srd(b, lo, nbytes, add=0):
        if add:
            e(f"s_add_u32 s{b}, s{lo}, {add}"); e(f"s_addc_u32 s{b+1}, s{lo+1}, 0"); e(f"s_and_b32 s{b+1}, s{b+1}, 0xffff")
        else:
            e(f"s_mov_b32 s{b}, s{lo}"); e(f"s_and_b32 s{b+1}, s{lo+1}, 0xffff")
        e(f"s_mov_b32 s{b+2}, {nbytes}"); e(f"s_mov_b32 s{b+3}, 0x20000")

    vQ, vL16, vTag, vScl, vFl, vDst, vJunk = 240, 241, 242, 244, 248, 249, 250
    R, O = 128, 160
    vAo, vPoll = 16, 24
    full = lambda: e("s_mov_b64 exec, -1")
    m56 = lambda: e(f"s_mov_b64 exec, s[{sM56}:{sM56+1}]")

    e("s_cmp_ge_u32 s2, 256")
    e("s_cbranch_scc1 L_end")
    e("s_load_dwordx8 s[4:11], s[0:1], 0")
    e("s_load_dwordx4 s[12:15], s[0:1], 32")
    e("s_load_dwordx2 s[34:35], s[0:1], 48")
    if ST: e(f"v_mov_b32 v{vSt}, 0")
    stamp(0, True); stamp(2)
    e("v_lshrrev_b32 v1, 6, v0")
    e("v_and_b32 v0, 63, v0")
    e(f"v_readfirstlane_b32 s{sW}, v1")
    e(f"s_and_b32 s{sT0}, s2, 7")
    e(f"s_lshr_b32 s{sT1}, s2, 3")
    e(f"s_and_b32 s{sM0}, s{sT1}, 7")
    e(f"s_add_u32 s{sA}, s{sM0}, s{sT0}")
    e(f"s_and_b32 s{sA}, s{sA}, 7")
    e(f"s_lshr_b32 s{sT1}, s{sT1}, 3")
    e(f"s_lshl_b32 s{sT0}, s{sT0}, 2")
    e(f"s_add_u32 s{sNT}, s{sT0}, s{sT1}")
    e(f"s_lshl_b32 s{sM0}, s{sM0}, 8")
    e(f"s_and_b32 s{sJ}, s{sW}, 3")
    e(f"s_lshr_b32 s{sMode}, s{sW}, 2")
    e(f"v_lshlrev_b32 v{vL16}, 4, v0")
    e("v_cmp_le_u32 vcc, 28, v0")
    e(f"v_mov_b32 v2, {2*14336 - 448}")
    e("v_mov_b32 v3, 224")
    e("v_cndmask_b32 v2, 0, v2, vcc")
    e("v_cndmask_b32 v3, 0, v3, vcc")
    e(f"v_add_u32 v{vQ}, v2, v{vL16}")
    e(f"v_lshlrev_b32 v{vFl}, 3, v0")
    e(f"v_sub_u32 v3, v{vFl}, v3")
    e("v_lshlrev_b32 v4, 1, v0")
    e(f"v_mov_b32 v5, {T_OFF}")
    e(f"s_mov_b32 s{sM56}, -1")
    e(f"s_mov_b32 s{sM56+1}, 0x00ffffff")
    e(f"s_lshl_b32 s{sSt}, s{sA}, 1")
    e(f"s_add_u32 s{sSt}, s{sSt}, s{sMode}")
    e(f"s_mul_i32 s{sSlot}, s{sMode}, {SLOT}")
    e(f"s_mul_i32 s{sWbase}, s{sNT}, {16*B_SLOT}")
    e(f"s_mul_i32 s{sBm0}, s{sJ}, 3584")
    e(f"s_mul_i32 s{sT3}, s{sNT}, 224")
    def calc_prod():
        e(f"s_lshl_b32 s{sQoff}, s{sSt}, 2")
        e(f"s_add_u32 s{sQoff}, s{sQoff}, s{sJ}")
        e(f"s_mul_i32 s{sQoff}, s{sQoff}, {16*14336}")
        e(f"s_mul_i32 s{sT0}, s{sNT}, 448")
        e(f"s_add_u32 s{sQoff}, s{sQoff}, s{sT0}")
    calc_prod()
    e("s_waitcnt lgkmcnt(0)")
    srd(SQ, 6, 1024 * 3584 * 4)
    srd(SC, 8, 32)
    srd(SS, 10, 3584 * 2)
    srd(SWs, 34, WS_BYTES, W_OFF)
    srd(SX, 4, 2048 * 1024 * 2)
    def small(vm):
        vm.issue("cb", f"buffer_load_ushort v6, v4, s[{SC}:{SC+3}], 0 offen")
        vm.issue("am", f"buffer_load_dwordx2 v[14:15], v3, s[{SS}:{SS+3}], s{sT3} offen")
        vm.issue("T", f"buffer_load_dwordx2 {vr(vTag,2)}, v5, s[{SWs}:{SWs+3}], 0 offen sc1")
    def qload(vm, n, R=R, sq=None):
        sq = sQoff if sq is None else sq
        i, rr = n >> 1, n & 1
        row = 8 * (i & 1) + 4 * (i >> 1) + rr
        e(f"s_add_u32 s{sT0}, s{sq}, {row*14336}")
        vm.issue(f"q{n}", f"buffer_load_dwordx4 {vr(R+4*n,4)}, v{vQ}, s[{SQ}:{SQ+3}], s{sT0} offen{aux(opts,'qld','nt')}")
    def calc_dst():
        e(f"s_add_u32 s{sT1}, s{sSlot}, s{sBm0}")
        e(f"s_add_u32 s{sT1}, s{sT1}, {A_SLOT}")
        e(f"v_add_u32 v{vDst}, s{sT1}, v{vL16}")
    def consts():
        e(f"s_lshl_b32 s{sLut}, s{sW}, 6")
        e(f"s_add_u32 s{sLut}, s{sLut}, {LUT_OFF}")
        e(f"s_lshl_b32 s{sFl}, s{sNT}, 9")
        e(f"s_add_u32 s{sFl}, s{sFl}, {FL_OFF}")
        e(f"s_mul_i32 s{sImg}, s{sSt}, {B_SLOT}")
        e(f"s_add_u32 s{sImg}, s{sImg}, s{sWbase}")
        e(f"s_add_u32 s{sImg}, s{sImg}, s{sBm0}")
        e(f"s_lshl_b32 s{sPub}, s{sSt}, 2")
        e(f"s_add_u32 s{sPub}, s{sPub}, s{sJ}")
        e(f"s_lshl_b32 s{sPub}, s{sPub}, 3")
        e(f"s_add_u32 s{sPub}, s{sPub}, s{sFl}")
        e(f"s_getreg_b32 s{sXcc}, hwreg(HW_REG_XCC_ID, 0, 4)")
        calc_dst()
    def lut_init(vm):
        vm.wait(["cb", "am", "T"])
        e("v_lshlrev_b32 v6, 16, v6")
        e(f"v_lshl_add_u32 v7, v0, 2, s{sLut}")
        e("s_mov_b64 exec, 0xffff")
        e("ds_write_b32 v7, v6")
        full()
        e(f"v_lshlrev_b32 v{vScl}, 16, v14")
        e(f"v_and_b32 v{vScl+1}, 0xffff0000, v14")
        e(f"v_lshlrev_b32 v{vScl+2}, 16, v15")
        e(f"v_and_b32 v{vScl+3}, 0xffff0000, v15")
        e(f"s_mov_b32 s{sT0}, 1664525")
        e(f"s_mov_b32 s{sT1}, 22695477")
        e(f"v_mul_lo_u32 v{vTag}, v{vTag}, s{sT0}")
        e(f"v_mul_lo_u32 v{vTag+1}, v{vTag+1}, s{sT1}")
        e(f"v_add_u32 v{vTag}, 1013904223, v{vTag}")
        e(f"v_add_u32 v{vTag+1}, 0x3c6ef35f, v{vTag+1}")
        e(f"v_and_b32 v{vTag}, -16, v{vTag}")
        e(f"v_or_b32 v{vTag}, s{sXcc}, v{vTag}")
    def unit_parts(i, R=R, O=O):
        p0, p1 = [], []
        for n in range(8):
            v = R + 8 * i + n
            p0.append(f"v_lshl_add_u32 v{v}, v{v}, 2, s{sLut}")
            p0.append(f"ds_read_b32 v{v}, v{v}")
        for rr in range(2):
            p1.append(f"s_waitcnt lgkmcnt({4 - 4*rr})")
            b = R + 8 * i + 4 * rr
            p1.append(f"v_pk_mul_f32 {vr(b,2)}, {vr(b,2)}, {vr(vScl,2)}")
            p1.append(f"v_pk_mul_f32 {vr(b+2,2)}, {vr(b+2,2)}, {vr(vScl+2,2)}")
            p1.append(f"v_cvt_pk_bf16_f32 v{O+4*i+2*rr}, v{b}, v{b+1}")
            p1.append(f"v_cvt_pk_bf16_f32 v{O+4*i+2*rr+1}, v{b+2}, v{b+3}")
        return p0 + p1
    def unit(vm, i, glob=True):
        vm.wait([f"q{2*i}", f"q{2*i+1}"])
        for t in unit_parts(i): e(t)
        if glob:
            vm.issue(f"st{i}", f"buffer_store_dwordx4 {vr(O+4*i,4)}, v{vL16}, s[{SWs}:{SWs+3}], s{sImg} offen offset:{896*i}{WST}")
        e(f"ds_write_b128 v{vDst}, {vr(O+4*i,4)} offset:{896*i}")
    def publish(vm=None):
        e("s_mov_b64 exec, 1")
        t = f"buffer_store_dwordx2 {vr(vTag,2)}, v{vFl}, s[{SWs}:{SWs+3}], s{sPub} offen{WST}"
        if vm: vm.issue("flag", t)
        else: e(t)
        full()
    e(f"s_cmp_eq_u32 s{sMode}, 1")
    e("s_cbranch_scc1 L_P")

    vm = VM(e)
    small(vm)
    stamp(11)
    m56()
    TOUCH = opts.get("touch", 0)
    def touch():
        e(f"s_and_b32 s{sT0}, s{sNT}, 3")
        e(f"s_lshl_b32 s{sT0}, s{sT0}, 2")
        e(f"s_add_u32 s{sT0}, s{sT0}, s{sJ}")
        e(f"s_lshl_b32 s{sT0}, s{sT0}, 4")
        e(f"s_add_u32 s{sT0}, s{sT0}, s{sM0}")
        e(f"s_lshl_b32 s{sT0}, s{sT0}, 11")
        e(f"s_lshl_b32 s{sT1}, s{sA}, 8")
        e(f"s_add_u32 s{sT2}, s{sT0}, s{sT1}")
        e("v_lshrrev_b32 v8, 4, v0")
        e("v_and_b32 v9, 15, v0")
        e("v_lshlrev_b32 v8, 11, v8")
        e("v_lshl_add_u32 v8, v9, 4, v8")
        for z in range(4):
            vm.issue(f"tch{z}", f"buffer_load_dwordx4 v[252:255], v8, s[{SX}:{SX+3}], s{sT2} offen")
            if z < 3: e(f"s_add_u32 s{sT2}, s{sT2}, 8192")
    if TOUCH == 4:
        full(); touch(); m56()
    for n in range(8): qload(vm, n)
    full()
    if TOUCH == 3: touch()
    consts()
    CFILL = opts.get("cfill", 0)
    def cfill(vm):
        for z in range(4):
            if z == 3: e("s_mov_b32 exec_hi, 0")
            t = f"buffer_load_dwordx4 v[252:255], v{vL16}, s[{SWs}:{SWs+3}], s{sImg} offen offset:{1024*z} sc1"
            if vm: vm.issue(f"cf{z}", t)
            else: e(t)
        e("s_mov_b32 exec_hi, -1")
    if CFILL == 2: cfill(vm)
    ACC = 16
    XB = [128, 160]
    WR = 192
    vA0b, vA1b, vBb, vA0, vA1, vBn, vBc, vSE, vSLw, vSLr, vOut = 1, 2, 7, 8, 9, 10, 11, 12, 13, 252, 253
    ES, LS = 144, 112
    def acc(mi, t): return ACC + (mi * 7 + t) * 4
    def fx(p, mi, h): return XB[p] + (mi * 2 + h) * 4
    def fw(n, h): return WR + (n % 7) * 8 + h * 4
    for r in range(112):
        e(f"v_mov_b32 v{ACC+r}, 0")
    lut_init(vm)
    srd(SO, 12, 2048 * 3584 * 2)
    e("v_lshrrev_b32 v3, 4, v0")
    e("v_and_b32 v4, 15, v0")
    e("v_lshrrev_b32 v5, 1, v4")
    e("v_xor_b32 v5, v5, v3")
    e("v_lshlrev_b32 v5, 4, v5")
    e("v_lshl_add_u32 v5, v4, 7, v5")
    e(f"s_lshl_b32 s{sT2}, s{sW}, 13")
    e(f"v_add_u32 v{vA0b}, s{sT2}, v5")
    e(f"v_xor_b32 v{vA1b}, 64, v{vA0b}")
    e(f"v_mov_b32 v{vA0}, v{vA0b}")
    e(f"v_mov_b32 v{vA1}, v{vA1b}")
    e("v_bfe_u32 v5, v0, 3, 2")
    e("v_lshrrev_b32 v6, 5, v0")
    e("v_lshl_add_u32 v5, v6, 3, v5")
    e("v_mul_u32_u24 v5, 448, v5")
    e("v_and_b32 v6, 3, v0")
    e("v_lshl_add_u32 v5, v6, 4, v5")
    e("v_bfe_u32 v6, v0, 2, 1")
    e("v_lshl_add_u32 v5, v6, 3, v5")
    e(f"v_add_u32 v{vBb}, {A_SLOT}, v5")
    e(f"v_mov_b32 v{vBn}, v{vBb}")
    e(f"v_mov_b32 v{vBc}, v{vBb}")
    e(f"s_mul_i32 s{sT0}, s{sW}, {64*ES}")
    e(f"s_add_u32 s{sT0}, s{sT0}, {SLOT}")
    e(f"v_mul_u32_u24 v5, {ES}, v4")
    e("v_lshl_add_u32 v5, v3, 3, v5")
    e(f"v_add_u32 v{vSE}, s{sT0}, v5")
    e(f"s_add_u32 s{sT0}, s{sT2}, {2*SLOT}")
    e(f"v_mul_u32_u24 v5, {LS}, v4")
    e("v_lshl_add_u32 v5, v3, 3, v5")
    e(f"v_add_u32 v{vSLw}, s{sT0}, v5")
    e("v_lshrrev_b32 v3, 3, v0")
    e("v_and_b32 v4, 7, v0")
    e(f"v_mul_u32_u24 v5, {LS}, v3")
    e("v_lshl_add_u32 v5, v4, 4, v5")
    e(f"v_add_u32 v{vSLr}, s{sT0}, v5")
    e(f"s_lshl_b32 s{sT2}, s{sW}, 6")
    e(f"s_add_u32 s{sT2}, s{sT2}, s{sM0}")
    e(f"s_mul_i32 s{sT2}, s{sT2}, 7168")
    e(f"s_add_u32 s{sT2}, s{sT2}, s{sT3}")
    e(f"v_mul_u32_u24 v5, 7168, v3")
    e("v_lshl_add_u32 v5, v4, 4, v5")
    e(f"v_add_u32 v{vOut}, s{sT2}, v5")
    e(f"s_mov_b32 s{sMaskS}, 0x3f3f3f3f")
    e(f"s_mov_b32 s{sMaskS+1}, 0x3f3f3f3f")
    m56()
    for i in range(4):
        unit(vm, i)
        if i == 0: stamp(12)
    full()
    stamp(3)
    vm.wait(["st3"])
    publish()
    stamp(13)
    e(f"s_mov_b32 s{sI}, 0")
    e("s_waitcnt lgkmcnt(0)")
    stamp(4)
    e("s_barrier                               ; B_-1")
    stamp(5); stamp(14, True)

    class LG:
        def __init__(self): self.q = []
        def issue(self, name, text): e(text); self.q.append(name)
        def wait(self, names):
            idx = [i for i, n in enumerate(self.q) if n in names]
            if not idx: return
            y = len(self.q) - 1 - max(idx)
            e(f"s_waitcnt lgkmcnt({min(y, 15)})"); self.q = self.q[max(idx) + 1:]
    def wreads(n, t, va):
        return [(f"w{n%7}", f"ds_read_b64_tr_b16 {vr(fw(n,h)+2*u,2)}, v{va} offset:{64*t + h*16*448 + u*4*448}") for h in range(2) for u in range(2)]
    def xreads(p):
        return [(f"x{p}", f"ds_read_b128 {vr(fx(p,mi,h),4)}, v{vA0 if h == 0 else vA1} offset:{2048*mi}") for mi in range(4) for h in range(2)]
    def col(lg, n, t, p, side, needx=False):
        lg.wait([f"w{n%7}"] + ([f"x{p}"] if needx else []))
        side = list(side)
        mis = range(4) if t % 2 == 0 else range(3, -1, -1)
        k = 0
        for j, mi in enumerate(mis):
            for hh in range(2):
                h = hh if j % 2 == 0 else 1 - hh
                e(f"v_mfma_f32_16x16x32_bf16 {vr(acc(mi,t),4)}, {vr(fw(n,h),4)}, {vr(fx(p,mi,h),4)}, {vr(acc(mi,t),4)}")
                left = 8 - k; k += 1
                for _ in range(-(-len(side) // left)):
                    nm, tx = side.pop(0)
                    if nm == "WAIT": lg.wait([tx])
                    elif nm: lg.issue(nm, tx)
                    else: e(tx)
        assert not side
    lg = LG()
    nxt = wreads(0, 0, vBn) + xreads(0) + wreads(1, 1, vBn) + wreads(2, 2, vBn)
    for nm, tx in nxt[:12]: lg.issue(nm, tx)
    e("s_waitcnt lgkmcnt(0)"); lg.q = []
    for nm, tx in nxt[12:]: lg.issue(nm, tx)
    entry_q = list(lg.q)
    adv = [(None, f"s_add_u32 s{sSlot}, s{sSlot}, {SLOT}"),
           (None, f"s_cmp_eq_u32 s{sSlot}, {NS*SLOT}"),
           (None, f"s_cselect_b32 s{sSlot}, 0, s{sSlot}"),
           (None, f"v_add_u32 v{vA0}, s{sSlot}, v{vA0b}"),
           (None, f"v_add_u32 v{vA1}, s{sSlot}, v{vA1b}"),
           (None, f"v_add_u32 v{vBn}, s{sSlot}, v{vBb}")]
    g.label("L_cons_loop")
    for p in range(2):
        for t in range(4):
            col(lg, t, t, p, wreads(t + 3, t + 3, vBc), needx=(t == 0))
        col(lg, 4, 4, p, adv)
        lg.wait(["w6"]); assert not lg.q
        stamp((f"s{sI}", 16), lvl=2)
        e("s_barrier                               ; B_s")
        stamp((f"s{sI}", 32), lvl=2)
        nxt = wreads(0, 0, vBn) + xreads(1 - p) + wreads(1, 1, vBn) + wreads(2, 2, vBn)
        col(lg, 5, 5, p, nxt[:12])
        tail = [(None, f"v_mov_b32 v{vBc}, v{vBn}"), (None, f"s_add_u32 s{sI}, s{sI}, 1")]
        if p == 1: tail.append((None, f"s_cmp_lt_u32 s{sI}, 14"))
        col(lg, 6, 6, p, nxt[12:] + tail)
        if p == 1:
            lg.wait(["w0", "x0"]); assert lg.q == entry_q, (lg.q, entry_q)
    e("s_cbranch_scc1 L_cons_loop")
    uses = [(0, t) for t in range(4)] + [(1, t) for t in range(4)] + [(q, t) for t in range(4, 7) for q in range(2)]
    def cvt(t, va, off):
        r = []
        for mi in (range(4) if t % 2 == 0 else range(3, -1, -1)):
            a = acc(mi, t)
            r.append((None, f"v_cvt_pk_bf16_f32 v{a}, v{a}, v{a+1}"))
            r.append((None, f"v_cvt_pk_bf16_f32 v{a+1}, v{a+2}, v{a+3}"))
            r.append(("o", f"ds_write_b64 v{va}, {vr(a,2)} offset:{off(mi)}"))
        return r
    def cvt_col(t):
        if t < 4: return cvt(t, vSE, lambda mi: mi * 16 * ES + 32 * t)
        return cvt(t, vSLw, lambda mi: mi * 16 * LS + 32 * (t - 4))
    def wr_use(n):
        if n >= len(uses): return []
        q, t = uses[n]
        return wreads(n, t, vBc if q == 0 else vBn)
    for n, (q, t) in enumerate(uses):
        side = []
        if n == 0: side = wr_use(3)
        elif n == 1: side = adv
        elif n == 2: side = xreads(1) + wr_use(4)
        elif n == 3: side = wr_use(5) + wr_use(6)
        else: side = wr_use(n + 3)
        if n >= 5 and uses[n - 1][0] == 1:
            pad = [(None, "s_nop 0")] * (4 - len(side))
            side = side + pad + cvt_col(uses[n - 1][1])
        if n == 9:
            side = side + [("WAIT", "o"), (None, "s_barrier                               ; E: columns 0..63 staged")] + [(None, "s_nop 0")] * 2
        col(lg, n, t, q, side, needx=(n == 4))
        if n == 1:
            e("s_barrier                               ; B_14")
        if n == 9: stamp(8)
    stamp(6); stamp(15, True)
    e("s_nop 7")
    for nm, tx in cvt_col(6): e(tx)
    e(f"s_mov_b64 exec, s[{sMaskS}:{sMaskS+1}]")
    for z in range(8):
        e(f"ds_read_b128 {vr(XB[0]+4*z,4)}, v{vSLr} offset:{8*z*LS}")
    for z in range(8):
        e(f"s_mov_b32 s{sT0}, {8*z*7168}")
        e(f"s_waitcnt lgkmcnt({7-z})")
        e(f"buffer_store_dwordx4 {vr(XB[0]+4*z,4)}, v{vOut}, s[{SO}:{SO+3}], s{sT0} offen offset:128{aux(opts,'auxs','nt')}")
        if z == 0: stamp(7)
    stamp_out()
    e("s_endpgm")

    g.label("L_P")
    vm = VM(e)
    sRet = 92
    sKp = [90, 91, 94, 95]
    WLD = aux(opts, "wld", "sc1")
    def p_setup():
        e("v_lshrrev_b32 v8, 3, v0")
        e("v_lshrrev_b32 v9, 4, v0")
        e("v_and_b32 v10, 7, v0")
        e("v_xor_b32 v10, v10, v9")
        e("v_xor_b32 v11, 4, v10")
        e(f"s_lshl_b32 s{sT0}, s{sJ}, 6")
        e(f"s_add_u32 s{sT0}, s{sT0}, s{sM0}")
        e(f"s_lshl_b32 s{sT0}, s{sT0}, 11")
        e(f"v_lshl_add_u32 v8, v8, 11, s{sT0}")
        e("v_lshl_add_u32 v10, v10, 4, v8")
        e("v_lshl_add_u32 v11, v11, 4, v8")
        for u in range(8):
            e(f"v_add_u32 v{vAo+u}, {16384*u - 1024*(u&3)}, v{10 + (u&1)}")
        e(f"s_lshl_b32 s{sAm0}, s{sJ}, 13")
        e(f"s_lshl_b32 s{sKp[0]}, s{sA}, 8")
        e(f"s_add_u32 s{sKp[1]}, s{sKp[0]}, 128")
        e(f"s_add_u32 s{sKp[2]}, s{sKp[0]}, 256")
        e(f"s_and_b32 s{sKp[2]}, s{sKp[2]}, 2047")
        e(f"s_add_u32 s{sKp[3]}, s{sKp[0]}, 512")
        e(f"s_and_b32 s{sKp[3]}, s{sKp[3]}, 2047")
        e(f"s_mov_b32 s{sNp}, {NPOLL}")
        e(f"s_mov_b64 s[{sRdy}:{sRdy+1}], 0")
        consts()
    def calc_pos2():
        e(f"s_lshl_b32 s{sBit}, s{sSt}, 2")
        e(f"s_add_u32 s{sBit}, s{sBit}, s{sJ}")
        e(f"s_mul_i32 s{sWk}, s{sSt}, {B_SLOT}")
        e(f"s_add_u32 s{sWk}, s{sWk}, s{sWbase}")
        e(f"s_add_u32 s{sWk}, s{sWk}, s{sBm0}")
    def xq(pos, quad):
        e(f"s_add_u32 m0, s{sAm0}, {(pos % NS)*SLOT + 4096*quad}")
        e("s_nop 0")
        for u in range(4 * quad, 4 * quad + 4):
            off = f" offset:{1024*(u&3)}" if (u & 3) else ""
            vm.issue(f"x{pos}_{u}", f"buffer_load_dwordx4 v{vAo+u}, s[{SX}:{SX+3}], s{sKp[pos]} offen{off} lds")
    nchk = [0]
    def wdma(vm, c):
        n = nchk[0]; nchk[0] += 1
        e(f"s_bitcmp1_b64 s[{sRdy}:{sRdy+1}], s{sBit}")
        e(f"s_cbranch_scc1 L_wok{n}")
        e(f"s_call_b64 s[{sRet}:{sRet+1}], L_slow")
        e(f"s_cbranch_scc0 L_wdone{n}")
        g.label(f"L_wok{n}")
        e(f"s_add_u32 s{sT1}, s{sSlot}, s{sBm0}")
        e(f"s_add_u32 m0, s{sT1}, {A_SLOT}")
        e("s_nop 0")
        for z in range(4):
            if z == 3: e("s_mov_b32 exec_hi, 0")
            off = f" offset:{1024*z}" if z else ""
            t = f"buffer_load_dwordx4 v{vL16}, s[{SWs}:{SWs+3}], s{sWk} offen{off}{WLD} lds"
            if vm: vm.issue(f"w{c}_{z}", t)
            else: e(t)
        e("s_mov_b32 exec_hi, -1")
        g.label(f"L_wdone{n}")
    def poll_issue(vm=None, name="poll"):
        t = f"buffer_load_dwordx2 {vr(vPoll,2)}, v{vFl}, s[{SWs}:{SWs+3}], s{sFl} offen sc1"
        if vm: vm.issue(name, t)
        else: e(t)
    def poll_eval():
        if not FB: e(f"v_cmp_eq_u64 s[{sRdy}:{sRdy+1}], {vr(vPoll,2)}, {vr(vTag,2)}")
        e("s_nop 3")
    def landed(c): return [f"x{c}_{u}" for u in range(8)] + ([f"w{c}_3"] if c > 1 else [])
    script = opts.get("ps", "sQSL0a1b2c3dMefpNFvWghXO")
    cur = "full"
    npoll_ = [0]
    done = set()
    def want(m):
        nonlocal cur
        if cur != m:
            (full if m == "full" else m56)(); cur = m
    for ch in script:
        if ch == "S": want("full"); p_setup()
        elif ch == "s": want("full"); small(vm); stamp(11)
        elif ch in "Qqr":
            want("m56")
            for n in {"Q": range(8), "q": range(4), "r": range(4, 8)}[ch]: qload(vm, n)
        elif ch == "L": want("full"); lut_init(vm)
        elif ch in "0123":
            want("m56"); unit(vm, int(ch))
            if ch == "0": stamp(12)
            if ch == "3": stamp(3)
        elif ch in "abcdefgh":
            k = "abcdefgh".index(ch)
            if k >= 6: assert "N" in done
            want("full"); xq(k >> 1, k & 1)
        elif ch in "MNO":
            c = "MNO".index(ch)
            if ch == "N": assert all(u in done for u in "0123")
            vm.wait(landed(c), " lgkmcnt(0)" if ch == "N" else "")
            if ch == "M": stamp(4)
            e(f"s_barrier                               ; B_{c-1}"); stamp(32 + c)
        elif ch == "p":
            want("full"); npoll_[0] += 1; poll_issue(vm, f"poll{npoll_[0]}")
        elif ch == "v":
            want("full"); vm.wait([f"poll{npoll_[0]}"]); poll_eval()
        elif ch in "WX":
            c = 2 + "WX".index(ch)
            assert all(u in done for u in "0123")
            if ch == "X": assert "N" in done
            want("full")
            e(f"s_lshr_b32 s{sSt}, s{sKp[c]}, 7")
            calc_pos2()
            e(f"s_mov_b32 s{sSlot}, {(c % NS)*SLOT}")
            wdma(vm, c); stamp(47 + c)
        elif ch == "F":
            want("full"); vm.wait([f"st{i}" for i in range(4)]); publish(vm); stamp(13)
        elif ch == "U":
            e(f"s_and_b32 s{sT0}, s{sNT}, 3")
            e(f"s_cmp_eq_u32 s{sT0}, s{sJ}")
            e("s_cbranch_scc1 L_P_u")
            e(f"s_waitcnt vmcnt({opts.get('uw', 6)})")
            g.label("L_P_u")
        done.add(ch)
    assert all(u in done for u in "SsL0123abcdefghMNOWXF")
    want("full")
    e(f"s_mov_b32 s{sC}, 4")
    e(f"s_mov_b32 s{sSlot}, {(4 % NS) * SLOT}")
    g.label("L_P_loop")
    e(f"s_add_u32 s{sT0}, s{sA}, s{sC}")
    e(f"s_cmp_lt_u32 s{sC}, 9")
    e(f"s_cselect_b32 s{sT1}, 7, 0")
    e(f"s_cselect_b32 s{sT2}, 0, 1")
    e(f"s_add_u32 s{sT0}, s{sT0}, s{sT1}")
    e(f"s_and_b32 s{sT0}, s{sT0}, 7")
    e(f"s_lshl_b32 s{sT0}, s{sT0}, 1")
    e(f"s_add_u32 s{sSt}, s{sT0}, s{sT2}")
    e(f"s_lshl_b32 s{sAk}, s{sSt}, 7")
    calc_pos2()
    e(f"s_cmp_eq_u64 s[{sRdy}:{sRdy+1}], -1")
    e("s_cbranch_scc1 L_P_nopoll")
    poll_issue()
    g.label("L_P_nopoll")
    for u in range(8):
        if u == 0:
            e(f"s_add_u32 m0, s{sSlot}, s{sAm0}"); e("s_nop 0")
        if u == 4:
            e("s_add_u32 m0, m0, 4096"); e("s_nop 0")
        off = f" offset:{1024*(u&3)}" if (u & 3) else ""
        e(f"buffer_load_dwordx4 v{vAo+u}, s[{SX}:{SX+3}], s{sAk} offen{off} lds")
    e(f"s_cmp_eq_u64 s[{sRdy}:{sRdy+1}], -1")
    e("s_cbranch_scc1 L_P_noeval")
    e("s_waitcnt vmcnt(8)")
    poll_eval()
    g.label("L_P_noeval")
    wdma(None, 0)
    stamp((f"s{sC}", 47), lvl=2)
    e("s_waitcnt vmcnt(12)")
    e("s_barrier                               ; B_(c-2)")
    e(f"s_add_u32 s{sSlot}, s{sSlot}, {SLOT}")
    e(f"s_cmp_eq_u32 s{sSlot}, {NS*SLOT}")
    e(f"s_cselect_b32 s{sSlot}, 0, s{sSlot}")
    e(f"s_add_u32 s{sC}, s{sC}, 1")
    e(f"s_cmp_lt_u32 s{sC}, 16")
    e("s_cbranch_scc1 L_P_loop")
    e("s_waitcnt vmcnt(0)")
    e("s_barrier                               ; B_14")
    srd(SO, 12, 2048 * 3584 * 2)
    e("v_lshrrev_b32 v3, 3, v0")
    e("v_and_b32 v4, 7, v0")
    e(f"s_mul_i32 s{sT0}, s{sJ}, {64*ES}")
    e(f"s_add_u32 s{sT0}, s{sT0}, {SLOT}")
    e(f"v_mul_u32_u24 v5, {ES}, v3")
    e("v_lshl_add_u32 v5, v4, 4, v5")
    e(f"v_add_u32 v28, s{sT0}, v5")
    e(f"s_lshl_b32 s{sT2}, s{sJ}, 6")
    e(f"s_add_u32 s{sT2}, s{sT2}, s{sM0}")
    e(f"s_mul_i32 s{sT2}, s{sT2}, 7168")
    e(f"s_add_u32 s{sT2}, s{sT2}, s{sT3}")
    e(f"v_mul_u32_u24 v5, 7168, v3")
    e("v_lshl_add_u32 v5, v4, 4, v5")
    e(f"v_add_u32 v29, s{sT2}, v5")
    e(f"s_cmp_lg_u32 s{sJ}, 0")
    e("s_cbranch_scc1 L_P_e")
    srd(SD, 14, 256)
    e("s_mov_b64 exec, 1")
    e("v_mov_b32 v26, 1")
    e(f"buffer_atomic_add v26, v{vFl}, s[{SD}:{SD+3}], 0 offen sc0")
    full()
    g.label("L_P_e")
    e("s_barrier                               ; E")
    for z in range(8):
        e(f"ds_read_b128 {vr(32+4*z,4)}, v28 offset:{8*z*ES}")
    for z in range(8):
        e(f"s_mov_b32 s{sT0}, {8*z*7168}")
        e(f"s_waitcnt lgkmcnt({7-z})")
        e(f"buffer_store_dwordx4 {vr(32+4*z,4)}, v29, s[{SO}:{SO+3}], s{sT0} offen{aux(opts,'auxs','nt')}")
    e(f"s_cmp_lg_u32 s{sJ}, 0")
    e("s_cbranch_scc1 L_P_fin")
    e("s_waitcnt vmcnt(8)")
    e("v_readfirstlane_b32 s40, v26")
    e("s_cmp_lg_u32 s40, 255")
    e("s_cbranch_scc1 L_P_fin")
    e("s_mov_b64 exec, 1")
    e(f"v_mov_b32 v5, {T_OFF}")
    e(f"buffer_store_dwordx2 {vr(vTag,2)}, v5, s[{SWs}:{SWs+3}], 0 offen sc1")
    g.label("L_P_fin")
    stamp_out()
    g.label("L_end")
    e("s_endpgm")
    g.label("L_slow")
    e(f"s_mov_b32 s{sCnt}, 0")
    g.label("L_slow_poll")
    poll_issue()
    e("s_waitcnt vmcnt(0)")
    poll_eval()
    e(f"s_add_u32 s{sCnt}, s{sCnt}, 1")
    e(f"s_bitcmp1_b64 s[{sRdy}:{sRdy+1}], s{sBit}")
    e("s_cbranch_scc1 L_slow_ret")
    e(f"s_cmp_lt_u32 s{sCnt}, s{sNp}")
    e("s_cbranch_scc1 L_slow_poll")
    e(f"s_mov_b32 s{sNp}, 0")
    calc_prod()
    calc_dst()
    vmf = VM(e)
    m56()
    for n in range(8): qload(vmf, n)
    for i in range(4): unit(vmf, i, glob=False)
    full()
    e("s_waitcnt vmcnt(0) lgkmcnt(0)")
    e("s_cmp_eq_u32 0, 1")
    g.label("L_slow_ret")
    e(f"s_setpc_b64 s[{sRet}:{sRet+1}]")

    out = HEADER
    out += f"; @launch grid=(256,1,1) block=(512,1,1) lds={LDS_TOTAL}\n"
    out += '.amdgcn_target "amdgcn-amd-amdhsa--gfx950"\n.text\n'
    out += f".globl {NAME}_kernel\n.p2align 8\n.type {NAME}_kernel,@function\n{NAME}_kernel:\n" + "\n".join(g.lines) + "\n"
    out += f""".section .rodata,"a"
.p2align 6
.amdhsa_kernel {NAME}_kernel
  .amdhsa_next_free_vgpr 256
  .amdhsa_next_free_sgpr 96
  .amdhsa_accum_offset 256
  .amdhsa_group_segment_fixed_size 0
  .amdhsa_kernarg_size 56
  .amdhsa_user_sgpr_count 2
  .amdhsa_user_sgpr_kernarg_segment_ptr 1
  .amdhsa_system_sgpr_workgroup_id_x 1
  .amdhsa_float_denorm_mode_32 3
.end_amdhsa_kernel
"""
    return out

if __name__ == "__main__":
    path = sys.argv[1] if len(sys.argv) > 1 else f"cdna_kernels/{NAME}.s"
    opts = {}
    for a in sys.argv[2:]:
        k, v = a.split("=")
        opts[k] = int(v) if v.lstrip("-").isdigit() and k != "ps" else v
    open(path, "w").write(build(opts))
    print("wrote", path)
```
